```python
import torch

def _softmax(x, axis=-1):
    return torch.softmax(x, dim=axis)

def _gelu(x):
    return torch.nn.functional.gelu(x, approximate='tanh')

def _silu(x):
    return torch.nn.functional.silu(x)

def _sigmoid(x):
    return torch.sigmoid(x)

def _layernorm(x, axis=-1, eps=1e-05):
    m = x.mean(dim=axis, keepdim=True)
    v = x.var(dim=axis, keepdim=True, unbiased=False)
    return (x - m) / torch.sqrt(v + eps)

def _scatter_add(tgt, idx, src, axis=0):
    return tgt.clone().index_add_(axis, idx, src)

def _segment_sum(src, seg, n):
    out = torch.zeros((n,) + src.shape[1:], dtype=src.dtype)
    return out.index_add_(0, seg, src)

def _pad(x, pw):
    flat = tuple((v for pair in reversed(pw) for v in pair))
    return torch.nn.functional.pad(x, flat)
kernel_name = 'recurrent_scan__linear_attn_block__mixer_gmlp__prompt'

def setup_inputs():

    _w = lambda a: (lambda t: t.to(torch.bfloat16) if t.is_floating_point() else t)(torch.as_tensor(a))

    def _A_setup():
        B, S, D = (1, 2048, 512)
        return {'x': _w((lambda *s: torch.randn(*s, dtype=torch.bfloat16) * 0.05)(B, S, D)), 'wqkv': _w((lambda *s: torch.randn(*s, dtype=torch.bfloat16) * 0.05)(D, 3 * D)), 'wo': _w((lambda *s: torch.randn(*s, dtype=torch.bfloat16) * 0.05)(D, D))}
    _A_in = _A_setup()

    def _B_setup():
        B, S, D, F = (1, 2048, 512, 1376)
        Fh = F // 2
        return {'x': _w((lambda *s: torch.randn(*s, dtype=torch.bfloat16) * 0.05)(B, S, D)), 'w_in': _w((lambda *s: torch.randn(*s, dtype=torch.bfloat16) * 0.4)(D, 2 * Fh)), 'w_sp': _w(0.01 * (lambda *s: torch.randn(*s, dtype=torch.bfloat16) * 0.4)(S, S)), 'b_sp': _w(1.0 + 0.01 * (lambda *s: torch.randn(*s, dtype=torch.bfloat16) * 0.05)(S)), 'w_out': _w((lambda *s: torch.randn(*s, dtype=torch.bfloat16) * 0.05)(Fh, D))}
    _B_in = _B_setup()
    return {'A_x': _A_in['x'], 'A_wqkv': _A_in['wqkv'], 'A_wo': _A_in['wo'], 'B_x': _B_in['x'], 'B_w_in': _B_in['w_in'], 'B_w_sp': _B_in['w_sp'], 'B_b_sp': _B_in['b_sp'], 'B_w_out': _B_in['w_out']}

def reference(A_x, A_wqkv, A_wo, B_x, B_w_in, B_w_sp, B_b_sp, B_w_out):

    def _A_ref(x, wqkv, wo):
        B, S, D = x.shape
        H = 32
        Dh = D // H
        qkv = (lambda x, *d: x.permute(*d))((x @ wqkv).reshape(B, S, 3, H, Dh), 2, 0, 3, 1, 4)
        q, k, v = (qkv[0], qkv[1], qkv[2])
        phi = lambda t: torch.where(t > 0, t + 1, torch.exp(t)) + 1e-06
        pq, pk = (phi(q), phi(k))
        kv = torch.einsum('bhsd,bhse->bhde', pk, v)
        z = torch.einsum('bhsd->bhd', pk)
        num = torch.einsum('bhqd,bhde->bhqe', pq, kv)
        den = torch.einsum('bhqd,bhd->bhq', pq, z)[..., None] + 1e-06
        o = num / den
        return (lambda x, *d: x.permute(*d))(o, 0, 2, 1, 3).reshape(B, S, D) @ wo

    def _B_ref(x, w_in, w_sp, b_sp, w_out):
        B, S, D = x.shape
        F = w_in.shape[-1]
        Fh = F // 2
        z = _gelu(torch.einsum('bsd,df->bsf', x, w_in))
        z1 = z[..., :Fh].clone()
        z2 = _layernorm(z[..., Fh:], axis=-1)
        g = torch.einsum('ts,bsf->btf', w_sp, z2) + b_sp[None, :, None]
        return torch.einsum('bsf,fd->bsd', z1 * g, w_out)
    x = A_x
    xn = _layernorm(x, axis=-1)
    s = _A_ref(xn, A_wqkv, A_wo)
    g = _silu(_B_ref(xn, B_w_in, B_w_sp, B_b_sp, B_w_out))
    return x + s * g
```

```python
import re

RE_REG = re.compile(r'^(-|\|)?(abs\()?([vas])(\d+|\[(\d+):(\d+)\])\)?\|?$')
TRANS = ('v_exp_f32', 'v_log_f32', 'v_rcp_f32', 'v_rsq_f32', 'v_sqrt_f32', 'v_sin_f32', 'v_cos_f32')

def regs_of(op):
    op = op.strip()
    if op in ('vcc',): return [('s', 'vcc_lo'), ('s', 'vcc_hi')]
    if op in ('vcc_lo', 'vcc_hi'): return [('s', op)]
    if op == 'exec': return [('s', 'exec_lo'), ('s', 'exec_hi')]
    if op in ('exec_lo', 'exec_hi'): return [('s', op)]
    if op == 'm0': return [('s', 'm0')]
    m = RE_REG.match(op)
    if not m: return []
    k = m.group(3)
    if m.group(5) is not None:
        return [(k, i) for i in range(int(m.group(5)), int(m.group(6)) + 1)]
    return [(k, int(m.group(4)))]

class Ins:
    __slots__ = ('text', 'op', 'ops', 'w', 'r', 'cls', 'label', 'target', 'mods', 'srcA', 'srcB', 'srcC', 'passes', 'data')
    def __init__(self, text):
        self.text = text
        self.label = None; self.target = None
        self.w = []; self.r = []; self.cls = 'other'; self.mods = ''
        self.srcA = self.srcB = self.srcC = None; self.passes = 0; self.data = []
        t = text.split(';')[0].strip()
        if t.endswith(':'):
            self.label = t[:-1]; self.op = None; self.cls = 'label'; return
        if t.startswith('.') or not t:
            self.op = None; self.cls = 'dir'; return
        parts = t.split(None, 1)
        op = parts[0]; self.op = op
        rest = parts[1] if len(parts) > 1 else ''
        raw = [x.strip() for x in re.split(r',(?![^\[]*\])', rest)] if rest else []
        ops = []
        mods = []
        for x in raw:
            xs = x.split()
            if not xs: continue
            ops.append(xs[0]); mods += xs[1:]
        self.ops = ops; self.mods = ' '.join(mods)
        R = [regs_of(o) for o in ops]
        flat = lambda L: [z for l in L for z in l]
        base = re.sub(r'_(e32|e64|dpp|sdwa)$', '', op)
        if op.startswith('v_mfma'):
            self.cls = 'mfma'; self.w = R[0]; self.srcA = R[1]; self.srcB = R[2]; self.srcC = R[3]
            self.r = R[1] + R[2] + R[3]
            self.passes = 8 if '32x32' in op else 4
        elif op.startswith('v_'):
            self.cls = 'valu'
            if base.startswith('v_cmp'):
                self.w = R[0]; self.r = flat(R[1:])
            elif base in ('v_swap_b32', 'v_permlane32_swap_b32', 'v_permlane16_swap_b32'):
                self.w = R[0] + R[1]; self.r = R[0] + R[1]
            elif base in ('v_add_co_u32', 'v_sub_co_u32'):
                self.w = R[0] + R[1]; self.r = flat(R[2:])
            elif base in ('v_addc_co_u32',):
                self.w = R[0] + R[1]; self.r = flat(R[2:])
            else:
                self.w = R[0]; self.r = flat(R[1:])
                if base in ('v_fmac_f32', 'v_dot2c_f32_bf16', 'v_writelane_b32') or 'dpp' in op or 'row_' in self.mods or 'quad_perm' in self.mods:
                    self.r = self.r + R[0]
                if base == 'v_cndmask_b32' and len(ops) == 3:
                    self.r = self.r + regs_of('vcc')
        elif op.startswith('ds_'):
            self.cls = 'ds'
            if op.startswith('ds_read') or op.startswith('ds_bpermute') or op.startswith('ds_swizzle'):
                self.w = R[0]; self.r = flat(R[1:])
            else:
                self.r = flat(R); self.data = flat(R[1:])
        elif op.startswith('buffer_') or op.startswith('global_'):
            self.cls = 'vmem'
            if op in ('buffer_inv', 'buffer_wbl2'):
                pass
            elif 'load' in op and ' lds' in (' ' + self.mods):
                self.r = flat(R) + [('s', 'm0')]
            elif 'load' in op:
                self.w = R[0]; self.r = flat(R[1:])
            else:
                self.r = flat(R); self.data = R[0]
                if 'atomic' in op and 'sc0' in self.mods: self.w = R[0]
        elif op.startswith('s_'):
            self.cls = 'salu'
            if op.startswith('s_load') or op.startswith('s_memtime') or op.startswith('s_memrealtime'):
                self.cls = 'smem'; self.w = R[0]; self.r = flat(R[1:])
            elif op.startswith('s_cbranch') or op == 's_branch':
                self.cls = 'branch'; self.target = ops[0]
                if 'vcc' in op: self.r = regs_of('vcc')
                if 'exec' in op: self.r = regs_of('exec')
            elif op.startswith('s_cmp') or op in ('s_waitcnt', 's_barrier', 's_nop', 's_sleep', 's_setprio', 's_endpgm', 's_bitcmp0_b32', 's_bitcmp1_b32'):
                self.r = flat(R)
            elif 'saveexec' in op:
                self.w = R[0] + regs_of('exec'); self.r = flat(R[1:]) + regs_of('exec')
            else:
                self.w = R[0]; self.r = flat(R[1:])
                if op in ('s_addk_i32', 's_mulk_i32'): self.r = self.r + R[0]
    def states(self):
        if self.cls in ('label', 'dir'): return 0
        if self.op == 's_nop': return int(self.ops[0], 0) + 1
        return 1
    def is_trans(self):
        return self.cls == 'valu' and re.sub(r'_(e32|e64|dpp|sdwa)$', '', self.op) in TRANS
    def is_dot(self):
        return self.cls == 'valu' and self.op.startswith('v_dot')
    def is_dpp(self):
        return self.cls == 'valu' and ('dpp' in self.op or 'row_' in self.mods or 'quad_perm' in self.mods)

class Tok:
    __slots__ = ('kind', 'opt', 'regs', 'seq')
    def __init__(self, kind, opt, regs, seq):
        self.kind = kind; self.opt = opt; self.regs = set(regs); self.seq = seq

class Lazy:
    __slots__ = ('tok',)
    def __init__(self): self.tok = None

def _cost(text):
    c = 0
    for line in text.split('\n'):
        op = line.strip().split(' ')[0]
        if not op or op.endswith(':'): continue
        if op.startswith('buffer_') or op.startswith('global_'): c += 17
        elif op.startswith('ds_write_b128'): c += 14
        elif op.startswith('ds_write'): c += 8
        elif op.startswith('ds_read_b128'): c += 6
        elif re.sub(r'_(e32|e64)$', '', op) in TRANS: c += 8
        else: c += 4
    return c

class Asm:
    def __init__(self):
        self.rec = None
        self.atom = 0
        self.ins = []
        self.vm = []
        self.lg = []
        self.optstack = []
        self.donestack = []
        self.nlabel = 0
        self.seq = 0
        self.smem_pending = set()
    def _push(self, cost, fn):
        if self.atom and self.rec and self.rec[-1][2]:
            c0, fns, _ = self.rec[-1]
            fns.append(fn); self.rec[-1] = (c0 + cost, fns, True)
        else:
            self.rec.append((cost, [fn], bool(self.atom)))
    def record(self, fn):
        assert self.rec is None
        self.rec = []
        fn()
        r, self.rec = self.rec, None
        return [(c, f) for c, f, _ in r]
    def atomic(self, fn):
        if self.rec is None: return fn()
        if not self.atom: self.rec.append((0, [], True))
        self.atom += 1
        r = fn()
        self.atom -= 1
        if not self.atom:
            c, f, _ = self.rec[-1]; self.rec[-1] = (c, f, False)
        return r
    def play(self, item):
        for f in item[1]: f()
    def raw(self, text):
        if self.rec is not None: return self._push(_cost(text), lambda: self.raw(text))
        self.ins.append(Ins(text))
    def label(self, name):
        self.raw(name + ':')
    def newlabel(self, p='L'):
        self.nlabel += 1
        return '%s_%d' % (p, self.nlabel)
    def _count_after(self, lst, idx):
        n = 0
        for t in lst[idx + 1:]:
            if t.opt is None or t.opt in self.optstack: n += 1
        return n
    def _wait(self, lst, idx, kind):
        n = self._count_after(lst, idx)
        cap = 63 if kind == 'vm' else 15
        n = min(n, cap)
        self.raw('s_waitcnt %s(%d)' % ('vmcnt' if kind == 'vm' else 'lgkmcnt', n))
        if self.optstack:
            self.donestack[-1].update(id(t) for t in lst[:idx + 1])
        else:
            del lst[:idx + 1]
    def _is_done(self, kind, t):
        return any(id(t) in d for d in self.donestack)
    def wait(self, tok):
        if tok is None: return
        if self.rec is not None: return self._push(4, lambda: self.wait(tok))
        if isinstance(tok, Lazy):
            assert tok.tok is not None, 'unresolved lazy token'
            return self.wait(tok.tok)
        if isinstance(tok, (list, tuple)):
            assert all(t.tok is not None for t in tok if isinstance(t, Lazy)), 'unresolved lazy token'
            toks = [(t.tok if isinstance(t, Lazy) else t) for t in tok]
            toks = [t for t in toks if t is not None]
            for kind in ('vm', 'lg'):
                ts = [t for t in toks if t.kind == kind]
                if ts: self.wait(max(ts, key=lambda t: t.seq))
            return
        lst = self.vm if tok.kind == 'vm' else self.lg
        for i, t in enumerate(lst):
            if t is tok:
                if not self._is_done(tok.kind, t): self._wait(lst, i, tok.kind)
                return
    def wait_all(self, kind):
        if self.rec is not None: return self._push(4, lambda: self.wait_all(kind))
        lst = self.vm if kind == 'vm' else self.lg
        self.raw('s_waitcnt %s(0)' % ('vmcnt' if kind == 'vm' else 'lgkmcnt'))
        if self.optstack:
            self.donestack[-1].update(id(t) for t in lst)
        else:
            del lst[:]
        if kind == 'lg': self.smem_pending = set()
    def __call__(self, text):
        if self.rec is not None:
            lz = Lazy()
            def run(): lz.tok = self(text)
            self._push(_cost(text), run)
            return lz
        tok = None
        for line in text.split('\n'):
            line = line.strip()
            if not line: continue
            I = Ins(line)
            touched = set(I.r) | set(I.w)
            if self.smem_pending & touched:
                self.wait_all('lg')
            for kind, lst in (('vm', self.vm), ('lg', self.lg)):
                last = -1
                for i, t in enumerate(lst):
                    if t.regs & touched and not self._is_done(kind, t): last = i
                if last >= 0: self._wait(lst, last, kind)
            self.ins.append(I)
            opt = self.optstack[-1] if self.optstack else None
            self.seq += 1
            if I.cls == 'vmem' and I.op not in ('buffer_inv', 'buffer_wbl2'):
                tok = Tok('vm', opt, I.w, self.seq); self.vm.append(tok)
            elif I.cls == 'ds':
                assert not self.smem_pending or True
                tok = Tok('lg', opt, I.w, self.seq); self.lg.append(tok)
            elif I.cls == 'smem':
                self.smem_pending |= set(I.w)
            elif I.op == 's_waitcnt':
                raise ValueError('use wait()/wait_all()')
        return tok
    def begin_opt(self):
        if self.rec is not None: return self._push(0, self.begin_opt)
        self.nlabel += 1
        b = self.nlabel
        self.optstack.append(b); self.donestack.append(set())
        return b
    def end_opt(self):
        if self.rec is not None: return self._push(0, self.end_opt)
        self.optstack.pop(); self.donestack.pop()
    def snapshot(self):
        return (list(self.vm), list(self.lg))
    def restore(self, snap):
        self.vm = list(snap[0]); self.lg = list(snap[1])

def overlap(a, b):
    return bool(set(a) & set(b))

def vregs(L): return [x for x in L if x[0] in 'va']
def sregs(L): return [x for x in L if x[0] == 's']

def need_states(P, C):
    n = 0
    if P.cls == 'valu':
        pw_v = vregs(P.w); pw_s = sregs(P.w)
        if C.cls == 'mfma' and overlap(pw_v, C.r): n = max(n, 2)
        if C.cls == 'vmem' and overlap(pw_s, C.r): n = max(n, 5)
        if C.cls == 'valu':
            if overlap(pw_s, C.r):
                n = max(n, 4 if C.op.startswith('v_readlane') or C.op.startswith('v_writelane') else 2)
            if C.is_dpp() and overlap(pw_v, C.r): n = max(n, 2)
            if C.op.startswith('v_permlane') and overlap(pw_v, C.r): n = max(n, 2)
            if (C.op.startswith('v_readlane') or C.op.startswith('v_readfirstlane')) and overlap(pw_v, C.r): n = max(n, 1)
            if P.is_trans() and not C.is_trans() and overlap(pw_v, C.r): n = max(n, 1)
            if ('sdwa' in P.op or ('op_sel' in P.mods and not P.op.startswith('v_pk_'))) and (overlap(pw_v, C.r) or overlap(pw_v, C.w)): n = max(n, 1)
        if P.is_trans() and C.cls in ('vmem', 'ds', 'mfma') and overlap(pw_v, C.r): n = max(n, 2)
        if P.is_dot():
            if overlap(pw_v, C.r) or overlap(pw_v, C.w):
                same = C.cls == 'valu' and C.op == P.op
                if same:
                    srcs = [z for o in C.ops[1:3] for z in regs_of(o)]
                    if overlap(pw_v, srcs): n = max(n, 3)
                else:
                    n = max(n, 3)
        if C.cls in ('salu', 'branch') and overlap(pw_s, C.r): n = max(n, 4)
        if overlap(pw_s, [('s', 'exec_lo'), ('s', 'exec_hi')]) and C.cls in ('mfma', 'valu'): n = max(n, 5)
    if P.cls == 'mfma':
        big = P.passes == 8
        if C.cls == 'mfma':
            if overlap(P.w, C.srcA) or overlap(P.w, C.srcB): n = max(n, 12 if big else 8)
            if overlap(P.w, C.srcC):
                if not (list(P.w) == list(C.srcC) and P.passes == C.passes): n = max(n, 10 if big else 6)
            elif overlap(P.w, C.w): n = max(n, 12 if big else 8)
        elif C.cls in ('valu', 'vmem', 'ds'):
            if overlap(P.w, C.r) or overlap(P.w, C.w): n = max(n, 12 if big else 8)
            if C.cls == 'valu' and overlap(P.srcC, C.w): n = max(n, 7 if big else 3)
    if P.cls == 'salu':
        if ('s', 'm0') in P.w and C.cls == 'vmem' and ('s', 'm0') in C.r: n = max(n, 1)
        if overlap(P.w, [('s', 'exec_lo'), ('s', 'exec_hi')]) and (C.is_dpp() if C.cls == 'valu' else False): n = max(n, 1)
    if P.cls in ('vmem', 'ds') and P.data and len(P.data) >= 3:
        if C.cls == 'valu' and overlap(P.data, C.w): n = max(n, 2)
        elif C.cls in ('vmem', 'ds', 'mfma') and overlap(P.data, C.w): n = max(n, 1)
    return n

def _need_at(ins, k, C, srcs, maxd):
    need = 0
    stack = [(k - 1, 0, False)]
    seen = set()
    cr = set(C.r) | set(C.w)
    while stack:
        j, d, via = stack.pop()
        while j >= 0 and d < maxd:
            if (j, d, via) in seen: break
            seen.add((j, d, via))
            P = ins[j]
            if P.cls == 'label':
                for b in srcs.get(P.label, []):
                    stack.append((b, d, True))
                j -= 1; via = False; continue
            if P.cls == 'dir':
                j -= 1; continue
            if P.op in ('s_branch', 's_endpgm') and not via: break
            via = False
            r = need_states(P, C) - d
            if r > need: need = r
            d += P.states()
            j -= 1
    return need

def fix_hazards(ins, maxd=14):
    total = 0
    for rnd in range(4):
        out = []
        srcs = {}
        added = 0
        full = {}
        for k, x in enumerate(ins):
            if x.cls == 'branch': full.setdefault(x.target, []).append(k)
        for k, C in enumerate(ins):
            if not (C.cls in ('label', 'dir') or C.op in ('s_nop', 's_waitcnt', 's_barrier')):
                out.append(C)
                n = _need_at(out, len(out) - 1, C, srcs, maxd)
                out.pop()
                if rnd > 0:
                    n = max(n, _need_at(ins, k, C, full, maxd))
                added += n
                while n > 0:
                    m = min(n, 16)
                    out.append(Ins('s_nop %d' % (m - 1))); n -= m
            out.append(C)
            if C.cls == 'branch': srcs.setdefault(C.target, []).append(len(out) - 1)
        ins = out
        total += added
        if rnd > 0 and added == 0: break
    return ins, total


class RegAlloc:
    def __init__(self, n, kind='v'):
        self.free_ = [True] * n; self.kind = kind; self.hi = 0
    def alloc(self, n=1, align=None):
        align = align or (1 if n == 1 else 2 if n == 2 else 4)
        for b in range(0, len(self.free_) - n + 1, align):
            if all(self.free_[b:b + n]):
                for k in range(b, b + n): self.free_[k] = False
                self.hi = max(self.hi, b + n)
                return b
        raise RuntimeError('out of %s regs (need %d, free %d)' % (self.kind, n, sum(self.free_)))
    def take(self, b, n=1):
        for k in range(b, b + n):
            assert self.free_[k], (b, n, k)
            self.free_[k] = False
        self.hi = max(self.hi, b + n)
        return b
    def free(self, b, n=1):
        for k in range(b, b + n):
            assert not self.free_[k], ('double free', k)
            self.free_[k] = True
    def nfree(self): return sum(self.free_)
    def snapshot(self): return list(self.free_)
    def restore(self, s): self.free_ = list(s)

def vr(b, n=1, k='v'):
    return '%s%d' % (k, b) if n == 1 else '%s[%d:%d]' % (k, b, b + n - 1)
def ar(b, n=1): return vr(b, n, 'a')
def sr(b, n=1): return vr(b, n, 's')


class Sched:
    def __init__(self, e):
        self.e = e; self.bg = []; self.debt = 0
    def push(self, fn):
        self.bg += self.e.record(fn)
    def gap(self, budget, forced):
        e = self.e
        b = budget - self.debt
        for x in forced:
            e(x); b -= _cost(x)
        while self.bg and b > 0 and (self.bg[0][0] <= b + 8):
            it = self.bg.pop(0); e.play(it); b -= it[0]
        if self.bg and b >= budget - 4 and self.bg[0][0] > b + 8:
            it = self.bg.pop(0); e.play(it); b -= it[0]
        self.debt = max(0, -b)
        self.debt = min(self.debt, 64)
    def group(self, mfmas, forced):
        n = len(mfmas)
        big = [i for i, m in enumerate(mfmas) if '32x32' in m] or list(range(n))
        per = {i: [] for i in range(n)}
        for k, x in enumerate(forced):
            per[big[k * len(big) // len(forced)]].append(x)
        for i, m in enumerate(mfmas):
            self.e(m)
            self.gap(24 if '32x32' in m else 8, per[i])
    def pump(self, cycles):
        e = self.e
        while self.bg and cycles > 0:
            it = self.bg.pop(0); e.play(it); cycles -= it[0]
    def ensure(self, toks):
        while any(isinstance(t, Lazy) and t.tok is None for t in toks):
            it = self.bg.pop(0); self.e.play(it)
    def flush(self):
        self.pump(10**9); self.debt = 0
```

```python
import sys, struct
from asmlib import *

KNAME = 'recurrent_scan__linear_attn_block__mixer_gmlp__prompt_kernel'

CNT = 0
C_Z, C_S1, C_S4, C_D1, C_KV, C_S3 = 0, 64, 128, 192, 224, 240
STATS = 0x8000
Z2N = 0x40000
Z1 = 0x300000
PQ = 0x5C0000
KVP = 0x7C0000
ZP = 0x8C0000
KVT = 0x8D0000
HB = 0x900000
TS = 0xC00000
WS_SIZE = 0xD00000
OOB = 0x40000000

K = 1024
L_X = 0
L_BY = 64 * K
L_TR = 64 * K
L_BX = 96 * K
L_SM = 156 * K
SM_A, SM_B, SM_CSY, SM_CSX = 0, 512, 1024, 1280
L_RED = 0
L_WO = 72 * K
L_KV = 136 * K
L_WT = 0
L_WT2 = 72 * K

def f2u(x): return struct.unpack('<I', struct.pack('<f', x))[0]
LOG2E = 1.4426950408889634
GC0 = -2.0 * 0.7978845608028654 * LOG2E
GC1 = GC0 * 0.044715

class Cfg:
    ts = False
    tsop = 's_memrealtime'
    tsel = None
    nodma = False
    stop = None
    epi_pump = 80
    D1 = 3
    DB = 6
    spin = 40000
    w_issue = {-1: [0, 1], 1: [2], 3: [3], 5: [4], 7: [5]}
    w_move = {1: [0], 3: [1], 5: [2], 7: [3]}
    c_arrZ = 1
    c_pollZ = 2
    c_chkZ = 3
    c_norm = 5
    c_arrS1 = 7
    red_pos = 8
    d1_poll = 9; d1_chk = 12
    s3_poll = 24; s3_chk = 28
    wo_pos = (2, 4, 6, 8)

def gen(cfg=Cfg):
    e = Asm()
    V = RegAlloc(256, 'v')
    sX, sBY, sBX, sWSP, sWS, sWO, sWT, sOUT, sBSP, sDBG = 4, 8, 12, 16, 20, 24, 28, 32, 36, 40
    s_w, s_rt, s_g, s_i, s_j, s_rot1, s_rot2, s_strY, s_strX = 44, 45, 46, 47, 48, 49, 50, 51, 52
    s_t0, s_t1, s_t2, s_t3 = 53, 54, 55, 56
    s_m4k, s_m2k, s_m8k = 57, 58, 59
    s_ones = 60
    s_xbase = 61
    s_spin = 62
    s_so = 63
    s_wg0, s_wg1 = 64, 65
    s_mask16 = 66
    s_dum0, s_dum1 = 68, 69
    s_c = 70
    s_ws0, s_ws1 = 72, 73
    TSB = 74
    nts = [0]
    tsnames = []
    def ts(name):
        if not cfg.ts: return
        if cfg.tsel is None:
            if name[0] == '_': return
        elif name not in cfg.tsel: return
        k = nts[0]
        if k < len(tsnames): assert tsnames[k] == name, (tsnames, name)
        else: tsnames.append(name)
        assert TSB + 2 * k + 1 < 102
        e.raw('%s s[%d:%d]' % (cfg.tsop, TSB + 2 * k, TSB + 2 * k + 1))
        nts[0] += 1

    srd = lambda b: 's[%d:%d]' % (b, b + 3)

    e.raw('s_cmp_ge_u32 s2, 256')
    e.raw('s_cbranch_scc1 L_end')
    e('s_load_dwordx16 s[64:79], s[0:1], 0')
    e('s_load_dwordx4 s[80:83], s[0:1], 64')
    e('s_load_dwordx2 s[84:85], s[0:1], 80')
    if cfg.ts: e.raw('%s s[100:101]' % cfg.tsop)
    vl = V.take(0)
    vt = [V.alloc() for _ in range(8)]
    e('v_lshrrev_b32 v%d, 6, v0' % vt[0])
    e('v_and_b32 v0, 63, v0')
    e('v_readfirstlane_b32 s%d, v%d' % (s_w, vt[0]))
    e('s_lshr_b32 s%d, s2, 3' % s_t0)
    e('s_lshl_b32 s%d, s%d, 3' % (s_t1, s_w))
    e('s_add_u32 s%d, s%d, s%d' % (s_t1, s_t1, s_t0))
    e('s_cmp_lt_u32 s%d, CODE_SLICES' % s_t1)
    e.raw('s_cbranch_scc0 L_nopf')
    e.begin_opt()
    e('s_getpc_b64 s[88:89]')
    e.label('L_pc')
    e('s_lshl_b32 s%d, s%d, 13' % (s_t1, s_t1))
    e('v_lshlrev_b32 v%d, 7, v0' % vt[1])
    e('v_add_u32 v%d, s%d, v%d' % (vt[1], s_t1, vt[1]))
    e('v_min_u32 v%d, L_end-L_pc, v%d' % (vt[1], vt[1]))
    vjunk = V.alloc()
    e('global_load_dword v%d, v%d, s[88:89]' % (vjunk, vt[1]))
    e.end_opt()
    e.label('L_nopf')
    e('s_and_b32 s%d, s2, 7' % s_t1)
    e('s_lshr_b32 s%d, s%d, 1' % (s_t2, s_t1))
    e('s_and_b32 s%d, s%d, 1' % (s_t1, s_t1))
    e('s_lshl_b32 s%d, s%d, 3' % (s_i, s_t2))
    e('s_and_b32 s%d, s%d, 7' % (s_t3, s_t0))
    e('s_add_u32 s%d, s%d, s%d' % (s_i, s_i, s_t3))
    e('s_lshr_b32 s%d, s%d, 3' % (s_j, s_t0))
    e('s_lshl_b32 s%d, s%d, 1' % (s_rot2, s_j))
    e('s_add_u32 s%d, s%d, s%d' % (s_rot2, s_rot2, s_t3))
    e('s_and_b32 s%d, s%d, 7' % (s_rot2, s_rot2))
    e('s_lshl_b32 s%d, s%d, 2' % (s_t3, s_t1))
    e('s_add_u32 s%d, s%d, s%d' % (s_j, s_j, s_t3))
    e('s_lshl_b32 s%d, s%d, 2' % (s_rt, s_t2))
    e('s_and_b32 s%d, s%d, 3' % (s_t3, s_t0))
    e('s_add_u32 s%d, s%d, s%d' % (s_rt, s_rt, s_t3))
    e('s_lshl_b32 s%d, s%d, 1' % (s_t3, s_t3))
    e('s_lshr_b32 s%d, s%d, 2' % (s_t0, s_t0))
    e('s_add_u32 s%d, s%d, s%d' % (s_rot1, s_t0, s_t3))
    e('s_and_b32 s%d, s%d, 7' % (s_rot1, s_rot1))
    e('s_cmp_eq_u32 s%d, 0' % s_t1)
    e('s_cselect_b32 s%d, 0xDB983210, 0xFECA7654' % s_t2 if False else 's_mov_b32 s%d, 0xFECA7654' % s_t2)
    e('s_cselect_b32 s%d, 0xDB983210, s%d' % (s_t2, s_t2))
    e('s_lshl_b32 s%d, s%d, 2' % (s_t0, s_t0))
    e('s_lshr_b32 s%d, s%d, s%d' % (s_g, s_t2, s_t0))
    e('s_and_b32 s%d, s%d, 15' % (s_g, s_g))
    e('s_lshl_b32 s%d, s%d, 12' % (s_m4k, s_w))
    e('s_lshl_b32 s%d, s%d, 11' % (s_m2k, s_w))
    e('s_lshl_b32 s%d, s%d, 13' % (s_m8k, s_w))
    e('s_lshl_b32 s%d, s%d, 17' % (s_xbase, s_rt))
    e('s_mov_b32 s%d, 0x3f803f80' % s_ones)
    s_colY, s_col0, s_col1 = 90, 91, 92
    e('s_lshl_b32 s%d, s%d, 7' % (s_t0, s_g))
    e('s_add_u32 s%d, s%d, %d' % (s_colY, s_t0, 42 * 32))
    e('s_cmp_eq_u32 s%d, 13' % s_g)
    e('s_cselect_b32 s%d, 1280, s%d' % (s_colY, s_colY))
    e('s_cmp_ge_u32 s%d, 14' % s_g)
    e('s_cselect_b32 s%d, 0x%x, s%d' % (s_colY, OOB, s_colY))
    e('s_sub_u32 s%d, s%d, 11' % (s_t1, s_g))
    e('s_sub_u32 s%d, s%d, %d' % (s_t2, s_t0, 5 * 128))
    e('s_cmp_lt_u32 s%d, 2' % s_t1)
    e('s_cselect_b32 s%d, s%d, s%d' % (s_colY, s_t2, s_colY))
    e('s_cselect_b32 s%d, 3072, 2752' % s_strY if False else 's_mov_b32 s%d, 2752' % s_strY)
    e('s_cselect_b32 s%d, 3072, s%d' % (s_strY, s_strY))
    e('s_cselect_b32 s93, 1, 0')
    e('s_lshl_b32 s%d, s%d, 8' % (s_t2, s_t1))
    e('s_sub_u32 s%d, s%d, 8' % (s_t3, s_g))
    e('s_lshl_b32 s%d, s%d, 8' % (s_t3, s_t3))
    e('s_cmp_ge_u32 s%d, 11' % s_g)
    e('s_cselect_b32 s%d, s%d, s%d' % (s_col0, s_t2, s_t3))
    e('s_mov_b32 s%d, 3072' % s_strX)
    e('s_cselect_b32 s%d, 2752, s%d' % (s_strX, s_strX))
    e('s_cselect_b32 s94, 0, 1')
    e('s_add_u32 s%d, s%d, 128' % (s_col1, s_col0))
    e('s_add_u32 s%d, s%d, 1024' % (s_t2, s_t0))
    e('s_add_u32 s%d, s%d, 2048' % (s_t3, s_t0))
    e('s_cmp_lt_u32 s%d, 8' % s_g)
    e('s_cselect_b32 s%d, s%d, s%d' % (s_col0, s_t2, s_col0))
    e('s_cselect_b32 s%d, s%d, s%d' % (s_col1, s_t3, s_col1))

    t8, p8, l4, m15, tA, tB, tC, tD = vt
    e('v_lshrrev_b32 v%d, 3, v0' % t8)
    e('v_and_b32 v%d, 7, v0' % p8)
    e('v_lshrrev_b32 v%d, 4, v0' % l4)
    e('v_and_b32 v%d, 15, v0' % m15)
    voX = V.alloc(4); voBY = V.alloc(2); voBX = V.alloc(4); voW = V.alloc(4)
    e('v_xor_b32 v%d, v%d, v%d' % (tA, p8, l4))
    e('v_lshlrev_b32 v%d, 4, v%d' % (tA, tA))
    e('s_lshl_b32 s%d, s%d, 15' % (s_t0, s_w))
    e('s_add_u32 s%d, s%d, s%d' % (s_t0, s_t0, s_xbase))
    e('v_lshl_add_u32 v%d, v%d, 10, v%d' % (tB, t8, tA))
    e('v_add_u32 v%d, s%d, v%d' % (voX, s_t0, tB))
    e('v_xor_b32 v%d, 64, v%d' % (tC, voX))
    e('v_add_u32 v%d, %d, v%d' % (voX + 1, 7168, tC))
    e('v_add_u32 v%d, %d, v%d' % (voX + 2, 2 * 7168, voX))
    e('v_add_u32 v%d, %d, v%d' % (voX + 3, 3 * 7168, tC))
    e('s_lshl_b32 s%d, s%d, 4' % (s_t0, s_w))
    e('v_add_u32 v%d, s%d, v%d' % (tB, s_t0, t8))
    e('v_mul_lo_u32 v%d, v%d, s%d' % (tB, tB, s_strY))
    e('v_and_b32 v%d, 1, v%d' % (tC, l4))
    e('v_lshlrev_b32 v%d, 2, v%d' % (tC, tC))
    e('v_xor_b32 v%d, v%d, v%d' % (tC, tC, p8))
    e('v_lshl_add_u32 v%d, v%d, 4, v%d' % (tB, tC, tB))
    e('v_add_u32 v%d, s%d, v%d' % (voBY, s_colY, tB))
    e('s_lshl_b32 s%d, s%d, 3' % (s_t1, s_strY))
    e('s_sub_u32 s%d, s%d, 1024' % (s_t1, s_t1))
    e('v_add_u32 v%d, s%d, v%d' % (voBY + 1, s_t1, voBY))
    def mksrd(b, lo, size):
        e('s_mov_b32 s%d, s%d' % (b, lo)); e('s_mov_b32 s%d, s%d' % (b + 1, lo + 1))
        e('s_mov_b32 s%d, 0x%x' % (b + 2, size)); e('s_mov_b32 s%d, 0x20000' % (b + 3))
    mksrd(sX, 64, 2048 * 1024)
    def selsrd(b, flag):
        e('s_cmp_eq_u32 s%d, 1' % flag)
        e('s_cselect_b32 s%d, s66, s72' % b); e('s_cselect_b32 s%d, s67, s73' % (b + 1))
        e('s_mov_b32 s%d, %d' % (b + 2, 512 * 2752))
        e('s_cselect_b32 s%d, %d, s%d' % (b + 2, 512 * 3072, b + 2))
        e('s_mov_b32 s%d, 0x20000' % (b + 3))
    selsrd(sBY, 93)
    mksrd(sWS, 84, WS_SIZE)
    mksrd(sDBG, 82, 256)

    vzero = V.alloc(); vone = V.alloc()
    e('v_mov_b32 v%d, 0' % vzero); e('v_mov_b32 v%d, 1' % vone)
    e('s_cmp_eq_u32 s2, 0')
    e.raw('s_cbranch_scc0 L_noinit')
    e.begin_opt()
    e('v_lshlrev_b32 v%d, 7, v0' % tB)
    tok_zero = e('buffer_store_dword v%d, v%d, %s, s%d offen sc1' % (vzero, tB, srd(sWS), s_m8k))
    e.end_opt()
    e.label('L_noinit')

    tokX, tokBY, tokBX, tokW = {}, {}, {}, {}
    s_c1, s_c2, s_hY, s_hX = s_rot1, s_rot2, s_strY, s_strX
    def dma(vo, sr_, so, n):
        return e('buffer_load_dwordx4 v%d, %s, s%d offen%s lds' % (vo, srd(sr_), so, (' offset:%d' % (n * 1024)) if n else ''))
    def adv(sreg):
        e('s_add_u32 s%d, s%d, 128' % (sreg, sreg)); e('s_and_b32 s%d, s%d, 1023' % (sreg, sreg))
    def issue_Y(p):
        e('s_add_u32 m0, s%d, %d' % (s_m4k, L_X + (p & 3) * 16384))
        e('s_mul_i32 s%d, s%d, s%d' % (s_so, s_c1, s_hY))
        tokX[p] = [dma(voX + n, sX, s_c1, n) for n in range(4)]
        e('s_add_u32 m0, s%d, %d' % (s_m2k, L_BY + (p & 3) * 8192))
        adv(s_c1)
        tokBY[p] = [dma(voBY + n, sBY, s_so, n) for n in range(2)]
    def issue_X(p):
        e('s_add_u32 m0, s%d, %d' % (s_m4k, L_BX + (p % 3) * 16384))
        e('s_mul_i32 s%d, s%d, s%d' % (s_so, s_c1, s_hX))
        tokBX[p] = [dma(voBX + n, sBX, s_so, n) for n in range(4)]
        adv(s_c1)
    def issue_W(q):
        toks = []
        for grp in range(2):
            e('s_add_u32 m0, s%d, %d' % (s_m8k, L_X + (q & 1) * 32768 + grp * 4096))
            e('s_add_u32 s%d, s%d, s%d' % (s_so, s_wc, s_wg0 + grp))
            toks += [dma(voW + n, sWSP, s_so, n) for n in range(4)]
        adv(s_wc)
        tokW[q] = toks
    s_wc = 61
    e('s_lshl_b32 s%d, s%d, 7' % (s_c1, s_rot1))
    e('s_lshl_b32 s%d, s%d, 7' % (s_wc, s_rot2))
    e('s_lshr_b32 s%d, s%d, 1' % (s_hY, s_strY))

    issue_Y(0)
    e('s_lshl_b32 s%d, s%d, 4' % (s_t0, s_w))
    e('v_add_u32 v%d, s%d, v%d' % (tB, s_t0, l4))
    e('v_mul_lo_u32 v%d, v%d, s%d' % (tB, tB, s_strX))
    e('v_lshlrev_b32 v%d, 2, v%d' % (tC, l4))
    e('v_xor_b32 v%d, v%d, v%d' % (tC, tC, m15))
    e('v_cmp_gt_u32 vcc, 8, v%d' % tC)
    e('v_mov_b32 v%d, s%d' % (tD, s_col1))
    e('v_mov_b32 v%d, s%d' % (voBX, s_col0))
    e('v_cndmask_b32 v%d, v%d, v%d, vcc' % (tD, tD, voBX))
    e('v_and_b32 v%d, 7, v%d' % (tC, tC))
    e('v_lshl_add_u32 v%d, v%d, 4, v%d' % (tB, tC, tB))
    e('v_add_u32 v%d, v%d, v%d' % (voBX, tB, tD))
    e('s_lshl_b32 s%d, s%d, 2' % (s_t1, s_strX))
    e('s_sub_u32 s%d, s%d, 1024' % (s_t1, s_t1))
    for n in range(1, 4):
        e('v_add_u32 v%d, s%d, v%d' % (voBX + n, s_t1, voBX + n - 1))
    e('s_lshr_b32 s%d, s%d, 1' % (s_hX, s_strX))
    for p in range(1, cfg.D1): issue_Y(p)
    selsrd(sBX, 94)
    mksrd(sWSP, 74, 2048 * 4096)
    mksrd(sWO, 68, 512 * 1024)
    mksrd(sWT, 78, 688 * 1024)
    mksrd(sOUT, 80, 2048 * 1024)
    mksrd(sBSP, 76, 4096)
    e('v_lshl_add_u32 v%d, v%d, 12, v%d' % (voW, t8, tA))
    e('v_xor_b32 v%d, 64, v%d' % (tC, voW))
    e('v_add_u32 v%d, %d, v%d' % (voW + 1, 8 * 4096 - 1024, tC))
    e('v_add_u32 v%d, %d, v%d' % (voW + 2, 2 * (8 * 4096 - 1024), voW))
    e('v_add_u32 v%d, %d, v%d' % (voW + 3, 3 * (8 * 4096 - 1024), tC))
    e('s_lshl_b32 s%d, s%d, 18' % (s_t0, s_i))
    e('s_lshl_b32 s%d, s%d, 10' % (s_t1, s_w))
    e('s_add_u32 s%d, s%d, s%d' % (s_t0, s_t0, s_t1))
    e('s_lshr_b32 s%d, s%d, 1' % (s_t1, s_w))
    e('s_lshl_b32 s%d, s%d, 17' % (s_t1, s_t1))
    e('s_add_u32 s%d, s%d, s%d' % (s_wg0, s_t0, s_t1))
    e('s_xor_b32 s%d, s%d, 0x20000' % (s_t1, s_t1))
    e('s_add_u32 s%d, s%d, s%d' % (s_wg1, s_t0, s_t1))
    e('s_mov_b32 s%d, 0xFFFF0000' % s_mask16); e('s_mov_b32 s%d, 0xFFFF0000' % (s_mask16 + 1))
    vA0 = V.alloc(4); vA1 = V.alloc(4)
    e('v_and_b32 v%d, 31, v0' % tB)
    e('v_lshlrev_b32 v%d, 7, v%d' % (tB, tB))
    e('v_add_u32 v%d, s%d, v%d' % (tB, s_m4k, tB))
    e('v_bfe_u32 v%d, v0, 1, 3' % tC)
    e('v_lshrrev_b32 v%d, 5, v0' % tD)
    e('v_xor_b32 v%d, v%d, v%d' % (tC, tC, tD))
    e('v_lshl_add_u32 v%d, v%d, 4, v%d' % (vA0, tC, tB))
    for kk in range(1, 4):
        e('v_xor_b32 v%d, %d, v%d' % (vA0 + kk, kk * 32, vA0))
    for kk in range(4):
        e('v_xor_b32 v%d, 4096, v%d' % (vA1 + kk, vA0 + kk))
    vBY = V.alloc(2); vBX = V.alloc(2)
    e('v_lshrrev_b32 v%d, 2, v%d' % (tB, m15))
    e('v_lshl_add_u32 v%d, v%d, 3, v%d' % (tC, tD, tB))
    e('v_and_b32 v%d, 16, v0' % tD)
    e('v_lshlrev_b32 v%d, 1, v%d' % (tD, tD))
    e('v_and_b32 v%d, 3, v0' % tA)
    e('v_lshl_add_u32 v%d, v%d, 3, v%d' % (tD, tA, tD))
    e('v_lshl_add_u32 v%d, v%d, 7, v%d' % (vBY, tC, tD))
    e('v_and_b32 v%d, 8, v0' % tA)
    e('v_lshlrev_b32 v%d, 3, v%d' % (tA, tA))
    e('s_and_b32 s%d, s%d, 1' % (s_t0, s_w))
    e('s_lshl_b32 s%d, s%d, 6' % (s_t1, s_t0))
    e('v_xor_b32 v%d, s%d, v%d' % (tA, s_t1, tA))
    e('v_add_u32 v%d, v%d, v%d' % (vBY, vBY, tA))
    e('v_add_u32 v%d, %d, v%d' % (vBY, L_BY, vBY))
    e('v_xor_b32 v%d, 64, v%d' % (vBY + 1, vBY))
    e('v_lshl_add_u32 v%d, v%d, 8, v%d' % (vBX, tC, tD))
    e('v_xor_b32 v%d, s%d, v%d' % (tA, s_w, tB))
    e('v_lshl_add_u32 v%d, v%d, 6, v%d' % (vBX, tA, vBX))
    e('v_add_u32 v%d, %d, v%d' % (vBX, L_BX, vBX))
    e('v_xor_b32 v%d, 128, v%d' % (vBX + 1, vBX))
    vsel = V.alloc(4)
    e('v_xor_b32 v%d, v0, v%d' % (tA, l4))
    e('v_and_b32 v%d, 1, v%d' % (tA, tA))
    e('v_cmp_eq_u32 vcc, 0, v%d' % tA)
    e('v_mov_b32 v%d, s%d' % (tB, s_ones))
    e('v_cndmask_b32 v%d, 0, v%d, vcc' % (vsel, tB))
    for n in range(1, 4): e('v_mov_b32 v%d, v%d' % (vsel + n, vsel))
    vst = V.alloc(4)
    for n in range(4): e('v_mov_b32 v%d, 0' % (vst + n))
    e('s_cmp_eq_u32 s2, 0')
    e.raw('s_cbranch_scc0 L_noinit2')
    e.begin_opt()
    e.wait(tok_zero)
    e('s_lshl_b32 s%d, s%d, 2' % (s_t0, s_w))
    e('s_mov_b64 exec, 1')
    e('buffer_store_dword v%d, v%d, %s, s%d offen sc1' % (vone, vzero, srd(sDBG), s_t0))
    e('s_mov_b64 exec, -1')
    e.end_opt()
    e.label('L_noinit2')
    if cfg.ts:
        e.wait_all('lg')
        e.raw('s_mov_b32 s%d, s100' % TSB); e.raw('s_mov_b32 s%d, s101' % (TSB + 1))
        nts[0] = 1; tsnames.append('start')
    ts('prolog')

    accY = V.alloc(32, 16); accX = V.alloc(64, 16)
    csY = V.alloc(4); csX = V.alloc(4)
    SA = V.alloc(16)
    SB = V.alloc(32)
    S = Sched(e)

    def areg(p, kk, rb): return ((p * 4 + kk) * 2 + rb) * 4
    def y_reads(p, kk):
        L = []
        for b in range(2):
            for e2 in range(2):
                L.append('ds_read_b64_tr_b16 %s, v%d offset:%d' % (vr(SB + 8 * kk + 4 * b + 2 * e2, 2), vBY + b, (p & 3) * 8192 + kk * 2048 + e2 * 512))
            if b == 0: L.append('ds_read_b128 %s, v%d offset:%d' % (vr(SA + 4 * kk, 4), vA0 + kk, L_X + (p & 3) * 16384))
        return L
    def y_acc_reads(p):
        L = []
        for kk in range(4):
            for rb in range(2):
                L.append('ds_read_b128 %s, v%d offset:%d' % (ar(areg(p, kk, rb), 4), (vA0 if rb == 0 else vA1) + kk, L_X + (p & 3) * 16384))
        return L
    def y_mf(p, kk):
        first = (p == 0 and kk == 0)
        L = []
        for b in range(2):
            acc = vr(accY + 16 * b, 16)
            L.append('v_mfma_f32_32x32x16_bf16 %s, %s, %s, %s' % (acc, vr(SB + 8 * kk + 4 * b, 4), vr(SA + 4 * kk, 4), '0' if first else acc))
        L.append('v_mfma_f32_16x16x32_bf16 %s, %s, %s, %s' % (vr(csY, 4), vr(vsel, 4), vr(SB + 8 * kk, 4), '0' if first else vr(csY, 4)))
        return L
    def y_dots(fill):
        for r in range(16):
            f = SA + r
            a = vst + 2 * (r & 1)
            e('v_dot2_f32_bf16 v%d, v%d, s%d, v%d' % (a, f, s_ones, a))
            e('v_dot2_f32_bf16 v%d, v%d, v%d, v%d' % (a + 1, f, f, a + 1))
            if fill: e(fill.pop(0))

    vinit = V.alloc(4)
    for p in range(8):
        S.ensure(tokX[p] + tokBY[p])
        e.wait(tokX[p] + tokBY[p])
        if p > 0: e.wait_all('lg')
        e.raw('s_barrier')
        if p == 0: ts('data0')
        ts('_y%d' % p)
        if p + cfg.D1 < 8: S.push(lambda: issue_Y(p + cfg.D1))
        else: S.push(lambda: issue_X(p + cfg.D1 - 8))
        if p == 5:
            S.push(lambda: e('buffer_load_dwordx4 %s, v%d, %s, 0 offen sc1' % (vr(vinit, 4), vzero, srd(sDBG))))
        if p == 0:
            for x in y_reads(0, 0) + y_reads(0, 1): e(x)
        else:
            S.group(y_mf(p - 1, 2), y_reads(p, 0)); S.group(y_mf(p - 1, 3), y_reads(p, 1))
        S.group(y_mf(p, 0), y_reads(p, 2)); S.group(y_mf(p, 1), y_reads(p, 3))
        S.flush()
        ts('_ym%d' % p)
        y_dots(y_acc_reads(p))
        ts('_yd%d' % p)
    vab = V.alloc(2)
    vsm = V.alloc()
    def finalize_ln(vs, n, dst):
        e('v_mul_f32 v%d, 0x%x, v%d' % (vs, f2u(1.0 / n), vs))
        e('v_mul_f32 v%d, v%d, v%d' % (vs + 2, vs, vs))
        e('v_mov_b32 v%d, 0x%x' % (vs + 3, f2u(1.0 / n)))
        e('v_fma_f32 v%d, v%d, v%d, -v%d' % (vs + 1, vs + 1, vs + 3, vs + 2))
        e('v_max_f32 v%d, 0, v%d' % (vs + 1, vs + 1))
        e('v_add_f32 v%d, 0x%x, v%d' % (vs + 1, f2u(1e-5), vs + 1))
        e('v_rsq_f32 v%d, v%d' % (dst, vs + 1))
        e('v_mul_f32 v%d, -v%d, v%d' % (dst + 1, vs, dst) if False else 'v_mul_f32_e64 v%d, -v%d, v%d' % (dst + 1, vs, dst))
    def rowstats():
        e('v_add_f32 v%d, v%d, v%d' % (vst, vst, vst + 2))
        e('v_add_f32 v%d, v%d, v%d' % (vst + 1, vst + 1, vst + 3))
        e('v_mov_b32 v%d, v%d' % (vst + 2, vst)); e('v_mov_b32 v%d, v%d' % (vst + 3, vst + 1))
        e('v_permlane32_swap_b32 v%d, v%d' % (vst, vst + 2)); e('v_permlane32_swap_b32 v%d, v%d' % (vst + 1, vst + 3))
        e('v_add_f32 v%d, v%d, v%d' % (vst, vst, vst + 2))
        e('v_add_f32 v%d, v%d, v%d' % (vst + 1, vst + 1, vst + 3))
        finalize_ln(vst, 512, vab)
        e('v_and_b32 v%d, 31, v0' % tA)
        e('v_lshlrev_b32 v%d, 2, v%d' % (tA, tA))
        e('v_add_u32 v%d, %d, v%d' % (vsm, L_SM, tA))
        e('s_lshl_b32 s%d, s%d, 7' % (s_t0, s_w))
        e('v_add_u32 v%d, s%d, v%d' % (tB, s_t0, vsm))
        e('ds_write_b32 v%d, v%d offset:%d' % (tB, vab, SM_A))
        e('ds_write_b32 v%d, v%d offset:%d' % (tB, vab + 1, SM_B))
    S.push(rowstats)
    S.group(y_mf(7, 2), []); S.group(y_mf(7, 3), []); S.flush()
    e('v_cndmask_b32 v%d, v%d, v%d, s[%d:%d]' % (tC, csY, csY + 1, s_mask16, s_mask16 + 1))
    e('s_and_b32 s%d, s%d, 1' % (s_t0, s_w))
    e('s_lshl_b32 s%d, s%d, 7' % (s_t0, s_t0))
    e('v_add_u32 v%d, s%d, v%d' % (tB, s_t0, vsm))
    e('ds_write_b32 v%d, v%d offset:%d' % (tB, tC, SM_CSY))
    V.free(csY, 4); V.free(vst, 4); V.free(SA, 16)
    V.free(voX, 4); V.free(voBY, 2); V.free(vBY, 2)
    vW = vA0
    for kk in range(4): e('v_add_u32 v%d, s%d, v%d' % (vW + kk, s_m4k, vA0 + kk))
    V.free(vA1, 4)
    def spin_until(load_fn, cond_not_ready, name):
        return e.atomic(lambda: spin_until_(load_fn, cond_not_ready))
    def spin_until_(load_fn, cond_not_ready):
        lo, ld = e.newlabel('L_sp'), e.newlabel('L_ok')
        cond_not_ready()
        e.raw('s_nop 4')
        e.raw('s_cbranch_vccz %s' % ld)
        e.begin_opt()
        e('s_mov_b32 s%d, %d' % (s_spin, cfg.spin))
        e.label(lo)
        e.raw('s_sleep 1')
        load_fn()
        e.wait_all('vm')
        cond_not_ready()
        e('s_sub_u32 s%d, s%d, 1' % (s_spin, s_spin))
        e.raw('s_cbranch_scc1 %s' % ld)
        e.raw('s_nop 4')
        e.raw('s_cbranch_vccnz %s' % lo)
        e.end_opt()
        e.label(ld)
    def init_cond():
        e('v_and_b32 v%d, v%d, v%d' % (tA, vinit, vinit + 1))
        e('v_and_b32 v%d, v%d, v%d' % (tB, vinit + 2, vinit + 3))
        e('v_and_b32 v%d, v%d, v%d' % (tA, tA, tB))
        e('v_cmp_ne_u32 vcc, 1, v%d' % tA)
    spin_until(lambda: e('buffer_load_dwordx4 %s, v%d, %s, 0 offen sc1' % (vr(vinit, 4), vzero, srd(sDBG))), init_cond, 'init')
    V.free(vinit, 4)
    e.wait(tokBX[0]); e.wait_all('lg')
    e.raw('s_barrier')
    ts('yend')

    vgc = V.alloc(2)
    e('v_mov_b32 v%d, 0x%x' % (vgc, f2u(GC1))); e('v_mov_b32 v%d, 0x%x' % (vgc + 1, f2u(GC0)))
    vpc = V.alloc(2)
    e('v_mov_b32 v%d, 0x%x' % (vpc, f2u(LOG2E))); e('v_mov_b32 v%d, 0x%x' % (vpc + 1, f2u(1e-6)))
    LO, HI = 'lo', 'hi'

    def lin_T(items, tmp):
        for k, (a, c, ab) in enumerate(items):
            e('v_pk_mul_f32 %s, %s, %s op_sel:[0,1] op_sel_hi:[1,1]' % (vr(tmp + 2 * k, 2), vr(c, 2), vr(ab, 2)))
        for k, (a, c, ab) in enumerate(items):
            e('v_pk_fma_f32 %s, %s, %s, %s op_sel:[0,0,0] op_sel_hi:[1,0,1]' % (vr(tmp + 2 * k, 2), vr(a, 2), vr(ab, 2), vr(tmp + 2 * k, 2)))
    def gelu_pk(n, y, t, dsts):
        P = lambda b, k: vr(b + 2 * k, 2)
        for k in range(n): e('v_pk_mul_f32 %s, %s, %s' % (P(t, k), P(y, k), P(y, k)))
        for k in range(n): e('v_pk_fma_f32 %s, %s, %s, %s op_sel:[0,0,1] op_sel_hi:[1,0,1]' % (P(t, k), P(t, k), vr(vgc, 2), vr(vgc, 2)))
        for k in range(n): e('v_pk_mul_f32 %s, %s, %s' % (P(t, k), P(t, k), P(y, k)))
        for k in range(2 * n): e('v_exp_f32 v%d, v%d' % (t + k, t + k))
        for k in range(n): e('v_pk_add_f32 %s, %s, 1.0 op_sel_hi:[1,0]' % (P(t, k), P(t, k)))
        for k in range(2 * n): e('v_rcp_f32 v%d, v%d' % (t + k, t + k))
        for k in range(n): e('v_pk_mul_f32 %s, %s, %s' % (P(y, k), P(y, k), P(t, k)))
        for k in range(n): e('v_cvt_pk_bf16_f32 v%d, v%d, v%d' % (dsts[k], y + 2 * k, y + 2 * k + 1))
    def phi_pk(n, y, t, dsts):
        P = lambda b, k: vr(b + 2 * k, 2)
        for k in range(n): e('v_pk_mul_f32 %s, %s, %s op_sel:[0,0] op_sel_hi:[1,0]' % (P(t, k), P(y, k), vr(vpc, 2)))
        for k in range(2 * n): e('v_exp_f32_e64 v%d, v%d clamp' % (t + k, t + k))
        for k in range(2 * n): e('v_max_f32 v%d, 0, v%d' % (y + k, y + k))
        for k in range(n): e('v_pk_add_f32 %s, %s, %s op_sel:[0,1] op_sel_hi:[1,1]' % (P(t, k), P(t, k), vr(vpc, 2)))
        for k in range(n): e('v_pk_add_f32 %s, %s, %s' % (P(y, k), P(y, k), P(t, k)))
        for k in range(n): e('v_cvt_pk_bf16_f32 v%d, v%d, v%d' % (dsts[k], y + 2 * k, y + 2 * k + 1))

    def read_cs(dst16, off, blk_sreg):
        e('v_lshrrev_b32 v%d, 5, v0' % tA)
        e('v_lshlrev_b32 v%d, 4, v%d' % (tA, tA))
        e('v_add_u32 v%d, s%d, v%d' % (tA, blk_sreg, tA))
        e('v_add_u32 v%d, %d, v%d' % (tA, L_SM + off, tA))
        for j in range(4): e('ds_read_b128 %s, v%d offset:%d' % (vr(dst16 + 4 * j, 4), tA, j * 32))

    def T_block(acc, cs, ab, kind, dst8, ty, tt):
        for hf in range(2):
            items = [(acc + 8 * hf + 2 * k, cs + 8 * hf + 2 * k, ab) for k in range(4)]
            lin_T(items, ty)
            if kind == 'gelu':
                gelu_pk(4, ty, tt, [dst8 + 4 * hf + k for k in range(4)])
            else:
                phi_pk(4, ty, tt, [dst8 + 4 * (k >> 1) + 2 * hf + (k & 1) for k in range(4)])
            if not e.optstack: S.pump(cfg.epi_pump)

    def arrive(idx_sreg_code):
        idx_sreg_code()
        def f():
            e('s_mov_b64 exec, 1')
            e('buffer_atomic_add v%d, v%d, %s, s%d offen' % (vone, vzero, srd(sWS), s_so))
            e('s_mov_b64 exec, -1')
        e.atomic(f)

    def x_reads(p, kk):
        L = []
        for b in range(2):
            for e2 in range(2):
                L.append('ds_read_b64_tr_b16 %s, v%d offset:%d' % (vr(SB + 8 * kk + 4 * b + 2 * e2, 2), vBX + b, (p % 3) * 16384 + kk * 4096 + e2 * 1024))
        return L
    def x_mf(p, kk, orient):
        first = (p == 0 and kk == 0)
        L = []
        for b in range(2):
            for rb in range(2):
                acc = vr(accX + 32 * rb + 16 * b, 16)
                wf = vr(SB + 8 * kk + 4 * b, 4); xf = ar(areg(p, kk, rb), 4)
                A_, B_ = (wf, xf) if orient == 'T' else (xf, wf)
                L.append('v_mfma_f32_32x32x16_bf16 %s, %s, %s, %s' % (acc, A_, B_, '0' if first else acc))
        L.append('v_mfma_f32_16x16x32_bf16 %s, %s, %s, %s' % (vr(csX, 4), vr(vsel, 4), vr(SB + 8 * kk, 4), '0' if first else vr(csX, 4)))
        return L
    def move_W(q):
        L = []
        for kk in range(4):
            for rb in range(2):
                L.append('ds_read_b128 %s, v%d offset:%d' % (ar(areg(q, kk, rb), 4), vW + kk, L_X + (q & 1) * 32768 + rb * 4096))
        return L
    tokWm = {}
    def do_move(q):
        e.wait(tokW[q])
        tokWm[q] = [e(x) for x in move_W(q)]
    def do_issueW(q):
        if q >= 2: e.wait(tokWm[q - 2])
        issue_W(q)

    snapA = e.snapshot(); snapV = V.snapshot(); nts0 = nts[0]
    tokBX0 = dict(tokBX)

    def path(kind):
        e.restore(snapA); V.restore(snapV); nts[0] = nts0
        tokBX.clear(); tokBX.update(tokBX0); tokW.clear(); tokWm.clear()
        orient = 'N' if kind == 'P' else 'T'
        for x in x_reads(0, 0) + x_reads(0, 1): e(x)
        for q in cfg.w_issue.get(-1, []): S.push(lambda: do_issueW(q))
        ty = V.alloc(8); tt = V.alloc(8); cs = V.alloc(16); pk = V.alloc(16)
        vo = V.alloc()
        chain = {}
        if kind in 'PQ':
            st = V.alloc(4)
            for n in range(4): e('v_mov_b32 v%d, 0' % (st + n))
            e('s_and_b32 s%d, s%d, 1' % (s_t1, s_w))
            e('s_or_b32 s%d, s%d, s%d' % (s_t0, s_t1, s_g))
            e('s_cmp_eq_u32 s%d, 0' % s_t0)
            e('s_cselect_b32 s%d, 0, -1' % s_dum0)
            e('s_xor_b32 s%d, s%d, 1' % (s_t0, s_t1))
            e('s_or_b32 s%d, s%d, s%d' % (s_t0, s_t0, s_g))
            e('s_cmp_eq_u32 s%d, 0' % s_t0)
            e('s_cselect_b32 s%d, 0, -1' % s_dum1)
            for b in range(2):
                e('s_and_b32 s%d, s%d, 1' % (s_t1, s_w))
                e('s_xor_b32 s%d, s%d, %d' % (s_t0, s_t1, b))
                e('s_lshl_b32 s%d, s%d, 7' % (s_t0, s_t0))
                read_cs(cs, SM_CSY, s_t0)
                T_block(accY + 16 * b, cs, vab, 'gelu', pk + 8 * b, ty, tt)
                for k in range(4): e('v_and_b32 v%d, s%d, v%d' % (pk + 8 * b + k, s_dum0 + b, pk + 8 * b + k))
                for k in range(8):
                    f = pk + 8 * b + k; a = st + 2 * (k & 1)
                    e('v_dot2_f32_bf16 v%d, v%d, s%d, v%d' % (a, f, s_ones, a))
                    e('v_dot2_f32_bf16 v%d, v%d, v%d, v%d' % (a + 1, f, f, a + 1))
            e('v_add_f32 v%d, v%d, v%d' % (st, st, st + 2))
            e('v_add_f32 v%d, v%d, v%d' % (st + 1, st + 1, st + 3))
            e('v_mov_b32 v%d, v%d' % (st + 2, st)); e('v_mov_b32 v%d, v%d' % (st + 3, st + 1))
            e('v_permlane32_swap_b32 v%d, v%d' % (st, st + 2)); e('v_permlane32_swap_b32 v%d, v%d' % (st + 1, st + 3))
            e('v_add_f32 v%d, v%d, v%d' % (st, st, st + 2))
            e('v_add_f32 v%d, v%d, v%d' % (st + 1, st + 1, st + 3))
            s_sb = 95
            e('s_lshl_b32 s%d, s%d, 2' % (s_t0, s_rt)); e('s_add_u32 s96, s%d, s%d' % (s_t0, s_w))
            e('s_mul_i32 s%d, s96, 3072' % s_sb); e('s_add_u32 s%d, s%d, %d' % (s_sb, s_sb, STATS))
            e('s_lshl_b32 s%d, s%d, 8' % (s_t0, s_g)); e('s_add_u32 s%d, s%d, s%d' % (s_so, s_sb, s_t0))
            e('v_lshlrev_b32 v%d, 3, v0' % vo)
            e('s_mov_b32 exec_hi, 0')
            tok_st = e('buffer_store_dwordx2 %s, v%d, %s, s%d offen sc1' % (vr(st, 2), vo, srd(sWS), s_so))
            e('s_mov_b64 exec, -1')
            V.free(accY, 32)
            zp = pk
            pk = V.alloc(16)
            vpoll = V.alloc(); sl = V.alloc(12)
            def c_arrZ():
                e.wait(tok_st)
                arrive(lambda: e('s_lshl_b32 s%d, s96, 7' % s_so))
            def zpoll_load():
                e('s_lshl_b32 s%d, s96, 7' % s_so)
                e('buffer_load_dword v%d, v%d, %s, s%d offen sc1' % (vpoll, vzero, srd(sWS), s_so))
            def c_chkZ():
                spin_until(zpoll_load, lambda: e('v_cmp_gt_u32 vcc, 11, v%d' % vpoll), 'Z')
                e('v_mov_b32 v%d, 0' % (sl + 10)); e('v_mov_b32 v%d, 0' % (sl + 11))
                ld = lambda q: e('buffer_load_dwordx2 %s, v%d, %s, s%d offen offset:%d sc1' % (vr(sl + 2 * q, 2), vo, srd(sWS), s_sb, q * 512))
                for q in range(5): ld(q)
                e.atomic(lambda: (e('s_mov_b32 exec_hi, 0'), ld(5), e('s_mov_b64 exec, -1')))
            tokz = []
            def c_norm():
                for q in range(1, 6):
                    e('v_add_f32 v%d, v%d, v%d' % (sl, sl, sl + 2 * q)); e('v_add_f32 v%d, v%d, v%d' % (sl + 1, sl + 1, sl + 2 * q + 1))
                e('v_mov_b32 v%d, v%d' % (sl + 2, sl)); e('v_mov_b32 v%d, v%d' % (sl + 3, sl + 1))
                e('v_permlane32_swap_b32 v%d, v%d' % (sl, sl + 2)); e('v_permlane32_swap_b32 v%d, v%d' % (sl + 1, sl + 3))
                e('v_add_f32 v%d, v%d, v%d' % (sl, sl, sl + 2)); e('v_add_f32 v%d, v%d, v%d' % (sl + 1, sl + 1, sl + 3))
                finalize_ln(sl, 688, sl + 4)
                wr = []
                e('v_and_b32 v%d, 31, v0' % tA)
                e('v_mul_u32_u24 v%d, 136, v%d' % (tA, tA))
                e('v_lshrrev_b32 v%d, 5, v0' % tB)
                e('v_lshl_add_u32 v%d, v%d, 3, v%d' % (tA, tB, tA))
                e('s_mul_i32 s%d, s%d, 4352' % (s_t2, s_w)); e('s_add_u32 s%d, s%d, %d' % (s_t2, s_t2, L_TR))
                e('s_and_b32 s%d, s%d, 1' % (s_t1, s_w)); e('s_lshl_b32 s%d, s%d, 6' % (s_t1, s_t1))
                e('v_add_u32 v%d, s%d, v%d' % (tA, s_t2, tA))
                e('v_add_u32 v%d, s%d, v%d' % (tC, s_t1, tA))
                e('s_xor_b32 s%d, s%d, 64' % (s_t1, s_t1))
                e('v_add_u32 v%d, s%d, v%d' % (tD, s_t1, tA))
                for b in range(2):
                    for hf in range(2):
                        for k in range(4):
                            z = zp + 8 * b + 4 * hf + k
                            e('v_lshlrev_b32 v%d, 16, v%d' % (ty + 2 * k, z))
                            e('v_and_b32 v%d, 0xffff0000, v%d' % (ty + 2 * k + 1, z))
                        for k in range(8):
                            e('v_fma_f32 v%d, v%d, v%d, v%d' % (ty + k, ty + k, sl + 4, sl + 5))
                        for k in range(4):
                            e('v_cvt_pk_bf16_f32 v%d, v%d, v%d' % (tt + k, ty + 2 * k, ty + 2 * k + 1))
                        if hf == 0:
                            for k in range(4): e('v_and_b32 v%d, s%d, v%d' % (tt + k, s_dum0 + b, tt + k))
                        for j2 in range(2):
                            wr.append(e('ds_write_b64 v%d, %s offset:%d' % (tC if b == 0 else tD, vr(tt + 2 * j2, 2), (2 * hf + j2) * 16)))
                e('v_bfe_u32 v%d, v0, 2, 2' % tA)
                e('v_lshl_add_u32 v%d, v%d, 3, v%d' % (tA, tB, tA))
                e('v_mul_u32_u24 v%d, 136, v%d' % (tA, tA))
                e('v_and_b32 v%d, 16, v0' % tC); e('v_lshl_add_u32 v%d, v%d, 1, v%d' % (tA, tC, tA))
                e('v_and_b32 v%d, 3, v0' % tC); e('v_lshl_add_u32 v%d, v%d, 3, v%d' % (tA, tC, tA))
                e('v_add_u32 v%d, s%d, v%d' % (tA, s_t2, tA))
                e.wait(wr)
                for cb in range(2):
                    for ks in range(2):
                        for e2 in range(2):
                            e('ds_read_b64_tr_b16 %s, v%d offset:%d' % (vr(zp + 8 * cb + 4 * ks + 2 * e2, 2), tA, (16 * ks + 4 * e2) * 136 + cb * 64))
                e('s_lshr_b32 s%d, s96, 1' % s_t0); e('s_mul_i32 s%d, s%d, 22' % (s_t0, s_t0))
                e('s_lshl_b32 s%d, s%d, 1' % (s_t1, s_g)); e('s_add_u32 s%d, s%d, s%d' % (s_t0, s_t0, s_t1))
                e('s_lshl_b32 s%d, s%d, 12' % (s_t0, s_t0))
                e('s_and_b32 s%d, s%d, 1' % (s_t1, s_w)); e('s_lshl_b32 s%d, s%d, 11' % (s_t1, s_t1))
                e('s_add_u32 s%d, s%d, s%d' % (s_t0, s_t0, s_t1)); e('s_add_u32 s%d, s%d, %d' % (s_so, s_t0, Z2N))
                e('s_add_u32 s%d, s%d, 4096' % (s_t0, s_so))
                e('v_lshlrev_b32 v%d, 4, v0' % tB)
                for cb in range(2):
                    for ks in range(2):
                        tokz.append(e('buffer_store_dwordx4 %s, v%d, %s, s%d offen offset:%d sc1' % (vr(zp + 8 * cb + 4 * ks, 4), tB, srd(sWS), s_so if cb == 0 else s_t0, ks * 1024)))
            def c_arrS1():
                e.wait(tokz)
                arrive(lambda: (e('s_lshl_b32 s%d, s96, 7' % s_so), e('s_add_u32 s%d, s%d, %d' % (s_so, s_so, C_S1 * 128))))
            for step, fn in ((cfg.c_arrZ, c_arrZ), (cfg.c_pollZ, zpoll_load), (cfg.c_chkZ, c_chkZ), (cfg.c_norm, c_norm), (cfg.c_arrS1, c_arrS1)):
                chain.setdefault(step, []).append(fn)
        else:
            lq, lz, ld = e.newlabel('L_rq'), e.newlabel('L_rz'), e.newlabel('L_rd')
            e('s_cmp_ge_u32 s%d, 14' % s_g)
            e.raw('s_cbranch_scc1 %s' % ld)
            e('s_cmp_eq_u32 s%d, 13' % s_g)
            e.raw('s_cbranch_scc1 %s' % lz)
            for sub in ('q', 'gelu'):
                e.begin_opt()
                if sub == 'q':
                    e('v_bfe_u32 v%d, v0, 4, 1' % tA); e('v_lshlrev_b32 v%d, 14, v%d' % (vo, tA))
                    e('v_lshrrev_b32 v%d, 5, v0' % tA); e('v_lshl_add_u32 v%d, v%d, 8, v%d' % (vo, tA, vo))
                    e('v_and_b32 v%d, 15, v0' % tA); e('v_lshl_add_u32 v%d, v%d, 4, v%d' % (vo, tA, vo))
                    e('s_lshl_b32 s%d, s%d, 2' % (s_t0, s_rt)); e('s_add_u32 s%d, s%d, s%d' % (s_t0, s_t0, s_w))
                    e('s_lshl_b32 s%d, s%d, 15' % (s_t0, s_t0))
                    e('s_sub_u32 s%d, s%d, 5' % (s_t1, s_g)); e('s_lshl_b32 s%d, s%d, 11' % (s_t1, s_t1))
                    e('s_add_u32 s%d, s%d, s%d' % (s_t0, s_t0, s_t1)); e('s_add_u32 s95, s%d, %d' % (s_t0, PQ))
                else:
                    e.label(lz)
                    e('v_lshlrev_b32 v%d, 4, v0' % vo)
                    e('s_lshl_b32 s%d, s%d, 2' % (s_t0, s_rt)); e('s_add_u32 s%d, s%d, s%d' % (s_t0, s_t0, s_w))
                    e('s_mul_i32 s%d, s%d, 43' % (s_t0, s_t0)); e('s_add_u32 s%d, s%d, 40' % (s_t0, s_t0))
                    e('s_lshl_b32 s%d, s%d, 10' % (s_t0, s_t0)); e('s_add_u32 s95, s%d, %d' % (s_t0, Z1))
                for b in range(2):
                    e('s_and_b32 s%d, s%d, 1' % (s_t1, s_w))
                    e('s_xor_b32 s%d, s%d, %d' % (s_t1, s_t1, b))
                    e('s_lshl_b32 s%d, s%d, 7' % (s_t0, s_t1))
                    read_cs(cs, SM_CSY, s_t0)
                    T_block(accY + 16 * b, cs, vab, sub, pk + 8 * b, ty, tt)
                    e('s_lshl_b32 s%d, s%d, %d' % (s_t0, s_t1, 10 if sub == 'q' else 11))
                    e('s_add_u32 s%d, s95, s%d' % (s_so, s_t0))
                    e('buffer_store_dwordx4 %s, v%d, %s, s%d offen sc1' % (vr(pk + 8 * b, 4), vo, srd(sWS), s_so))
                    if sub == 'gelu':
                        e('s_cmp_eq_u32 s%d, 1' % s_t1)
                        e('s_cselect_b32 s%d, 0x%x, s%d' % (s_so, OOB, s_so))
                    e('buffer_store_dwordx4 %s, v%d, %s, s%d offen offset:%d sc1' % (vr(pk + 8 * b + 4, 4), vo, srd(sWS), s_so, 512 if sub == 'q' else 1024))
                e.wait_all('lg')
                e.end_opt()
                if sub == 'q': e.raw('s_branch %s' % ld)
            e.label(ld)
            V.free(accY, 32)
        ts('yepi')
        for p in range(8):
            if p > 0:
                S.ensure(tokBX[p])
                e.wait(tokBX[p]); e.wait_all('lg')
                e.raw('s_barrier')
                ts('_x%d' % p)
            nx = p + 2
            if p >= 1 and nx < 8 and nx not in tokBX: S.push(lambda: issue_X(nx))
            for fn in chain.get(p, []): S.push(fn)
            if p > 0:
                S.group(x_mf(p - 1, 2, orient), x_reads(p, 0)); S.group(x_mf(p - 1, 3, orient), x_reads(p, 1))
            for q in cfg.w_move.get(p, []): S.push(lambda: do_move(q))
            for q in cfg.w_issue.get(p, []): S.push(lambda: do_issueW(q))
            S.group(x_mf(p, 0, orient), x_reads(p, 2) + x_reads(p, 3)); S.group(x_mf(p, 1, orient), [])
        S.group(x_mf(7, 2, orient), []); S.group(x_mf(7, 3, orient), [])
        S.flush()
        ts('xend')
        e('v_cndmask_b32 v%d, v%d, v%d, s[%d:%d]' % (tC, csX, csX + 1, s_mask16, s_mask16 + 1))
        e('s_lshl_b32 s%d, s%d, 7' % (s_t0, s_w))
        e('v_add_u32 v%d, s%d, v%d' % (tB, s_t0, vsm))
        e('ds_write_b32 v%d, v%d offset:%d' % (tB, tC, SM_CSX))
        e.wait_all('lg')
        e.raw('s_barrier')
        V.free(SB, 32); V.free(vsel, 4); V.free(vBX, 2); V.free(voBX, 4); V.free(csX, 4)
        if kind in 'PQ':
            V.free(zp, 16); V.free(sl, 12); V.free(vpoll); V.free(st, 4)
        rest = [q for q in range(8) if q not in tokWm]
        def pump_w():
            if not rest: return
            q = rest.pop(0)
            if q not in tokW: do_issueW(q)
            do_move(q)
            for q2 in range(8):
                if q2 not in tokW and q2 - 2 in tokWm: do_issueW(q2)
        stores = []
        if kind == 'P':
            ls = e.newlabel('L_sw')
            e('s_cmp_lt_u32 s%d, 2' % s_w)
            e.raw('s_cbranch_scc1 %s' % ls)
            e.begin_opt()
            for rb in range(2):
                for r in range(16): e('v_swap_b32 v%d, v%d' % (accX + 32 * rb + r, accX + 32 * rb + 16 + r))
            e.end_opt()
            e.label(ls)
            ck = V.alloc(2)
            e('s_and_b32 s%d, s%d, 1' % (s_t0, s_w)); e('s_lshl_b32 s%d, s%d, 7' % (s_t0, s_t0))
            e('v_add_u32 v%d, s%d, v%d' % (tB, s_t0, vsm))
            e('ds_read_b32 v%d, v%d offset:%d' % (ck, tB, SM_CSX))
            e('ds_read_b32 v%d, v%d offset:%d' % (ck + 1, tB, SM_CSX + 256))
            ra = cs; rbv = V.alloc(16)
            kf = pk; vf = V.alloc(16)
            D = V.alloc(16, 16); D2 = V.alloc(16, 16); onesf = V.alloc(4)
            for n in range(4): e('v_mov_b32 v%d, s%d' % (onesf + n, s_ones))
            for rb in range(2):
                e('s_xor_b32 s%d, s%d, %d' % (s_t0, s_w, rb)); e('s_lshl_b32 s%d, s%d, 7' % (s_t0, s_t0))
                e('v_lshrrev_b32 v%d, 5, v0' % tA); e('v_lshlrev_b32 v%d, 4, v%d' % (tA, tA))
                e('v_add_u32 v%d, s%d, v%d' % (tA, s_t0, tA)); e('v_add_u32 v%d, %d, v%d' % (tA, L_SM, tA))
                for j in range(4):
                    e('ds_read_b128 %s, v%d offset:%d' % (vr(ra + 4 * j, 4), tA, SM_A + j * 32))
                    e('ds_read_b128 %s, v%d offset:%d' % (vr(rbv + 4 * j, 4), tA, SM_B + j * 32))
                for sl_ in range(2):
                    for hf in range(2):
                        a0 = accX + 32 * rb + 16 * sl_ + 8 * hf
                        for k in range(4):
                            e('v_pk_mul_f32 %s, %s, %s op_sel:[0,%d] op_sel_hi:[1,%d]' % (vr(ty + 2 * k, 2), vr(rbv + 8 * hf + 2 * k, 2), vr(ck, 2), sl_, sl_))
                        for k in range(4):
                            e('v_pk_fma_f32 %s, %s, %s, %s' % (vr(ty + 2 * k, 2), vr(a0 + 2 * k, 2), vr(ra + 8 * hf + 2 * k, 2), vr(ty + 2 * k, 2)))
                        if sl_ == 0:
                            phi_pk(4, ty, tt, [kf + 8 * rb + 4 * hf + k for k in range(4)])
                        else:
                            for k in range(4): e('v_cvt_pk_bf16_f32 v%d, v%d, v%d' % (vf + 8 * rb + 4 * hf + k, ty + 2 * k, ty + 2 * k + 1))
                    pump_w()
            for s4 in range(4):
                e('v_mfma_f32_32x32x16_bf16 %s, %s, %s, %s' % (vr(D, 16), vr(kf + 4 * s4, 4), vr(vf + 4 * s4, 4), '0' if s4 == 0 else vr(D, 16)))
                e('v_mfma_f32_32x32x16_bf16 %s, %s, %s, %s' % (vr(D2, 16), vr(kf + 4 * s4, 4), vr(onesf, 4), '0' if s4 == 0 else vr(D2, 16)))
            e('s_lshl_b32 s%d, s%d, 1' % (s_t0, s_g)); e('s_and_b32 s%d, s%d, 1' % (s_t1, s_w))
            e('s_add_u32 s97, s%d, s%d' % (s_t0, s_t1))
            e('s_lshl_b32 s%d, s97, 6' % s_t0)
            e('s_lshl_b32 s%d, s%d, 1' % (s_t1, s_rt)); e('s_add_u32 s%d, s%d, s%d' % (s_t0, s_t0, s_t1))
            e('s_lshr_b32 s%d, s%d, 1' % (s_t1, s_w)); e('s_add_u32 s%d, s%d, s%d' % (s_t0, s_t0, s_t1))
            e('s_lshl_b32 s%d, s%d, 10' % (s_t1, s_t0)); e('s_add_u32 s%d, s%d, %d' % (s_t1, s_t1, KVP))
            e('s_lshl_b32 s%d, s%d, 6' % (s_t2, s_t0)); e('s_add_u32 s%d, s%d, %d' % (s_t2, s_t2, ZP))
            e('v_bfe_u32 v%d, v0, 4, 1' % tA); e('v_lshrrev_b32 v%d, 5, v0' % tB); e('v_and_b32 v%d, 15, v0' % tC)
            e('v_lshlrev_b32 v%d, 15, v%d' % (vo, tA)); e('v_lshl_add_u32 v%d, v%d, 8, v%d' % (vo, tB, vo)); e('v_lshl_add_u32 v%d, v%d, 4, v%d' % (vo, tC, vo))
            e('v_lshlrev_b32 v%d, 11, v%d' % (tD, tA)); e('v_lshl_add_u32 v%d, v%d, 4, v%d' % (tD, tB, tD))
            for r in range(8): e('v_cndmask_b32 v%d, v%d, v%d, s[%d:%d]' % (ty + r, D + r, D + 8 + r, s_mask16, s_mask16 + 1))
            for r in range(8): e('v_cndmask_b32 v%d, v%d, v%d, s[%d:%d]' % (tt + r, D2 + r, D2 + 8 + r, s_mask16, s_mask16 + 1))
            stores.append(e('buffer_store_dwordx4 %s, v%d, %s, s%d offen sc1' % (vr(ty, 4), vo, srd(sWS), s_t1)))
            stores.append(e('buffer_store_dwordx4 %s, v%d, %s, s%d offen offset:512 sc1' % (vr(ty + 4, 4), vo, srd(sWS), s_t1)))
            e('s_mov_b32 exec_lo, 0x00010001'); e('s_mov_b32 exec_hi, 0x00010001')
            stores.append(e('buffer_store_dwordx4 %s, v%d, %s, s%d offen sc1' % (vr(tt, 4), tD, srd(sWS), s_t2)))
            stores.append(e('buffer_store_dwordx4 %s, v%d, %s, s%d offen offset:32 sc1' % (vr(tt + 4, 4), tD, srd(sWS), s_t2)))
            e('s_mov_b64 exec, -1')
            arr = lambda: (e('s_lshl_b32 s%d, s97, 7' % s_so), e('s_add_u32 s%d, s%d, %d' % (s_so, s_so, C_KV * 128)))
        else:
            sub = 'q' if kind == 'Q' else 'gelu'
            ab1 = V.alloc(2)
            e('s_xor_b32 s%d, s%d, 1' % (s_t0, s_w)); e('s_lshl_b32 s%d, s%d, 7' % (s_t0, s_t0))
            e('v_add_u32 v%d, s%d, v%d' % (tB, s_t0, vsm))
            e('ds_read_b32 v%d, v%d offset:%d' % (ab1, tB, SM_A)); e('ds_read_b32 v%d, v%d offset:%d' % (ab1 + 1, tB, SM_B))
            if sub == 'q':
                e('v_bfe_u32 v%d, v0, 4, 1' % tA); e('v_lshlrev_b32 v%d, 14, v%d' % (vo, tA))
                e('v_lshrrev_b32 v%d, 5, v0' % tA); e('v_lshl_add_u32 v%d, v%d, 8, v%d' % (vo, tA, vo))
                e('v_and_b32 v%d, 15, v0' % tA); e('v_lshl_add_u32 v%d, v%d, 4, v%d' % (vo, tA, vo))
            else:
                e('v_lshlrev_b32 v%d, 4, v0' % vo)
            for b in range(2):
                e('s_xor_b32 s95, s%d, %d' % (s_w, 2 * b))
                e('s_lshl_b32 s%d, s95, 7' % s_t0)
                read_cs(cs, SM_CSX, s_t0)
                for rb in range(2):
                    d8 = pk + 8 * rb
                    T_block(accX + 32 * rb + 16 * b, cs, vab if rb == 0 else ab1, sub, d8, ty, tt)
                    e('s_xor_b32 s%d, s%d, %d' % (s_t0, s_w, rb)); e('s_lshl_b32 s%d, s%d, 2' % (s_t1, s_rt))
                    e('s_add_u32 s%d, s%d, s%d' % (s_t0, s_t0, s_t1))
                    if sub == 'q':
                        e('s_lshl_b32 s%d, s%d, 5' % (s_t0, s_t0)); e('s_add_u32 s%d, s%d, s95' % (s_t0, s_t0))
                        e('s_lshl_b32 s%d, s%d, 2' % (s_t1, s_g)); e('s_add_u32 s%d, s%d, s%d' % (s_t0, s_t0, s_t1))
                        e('s_lshl_b32 s%d, s%d, 10' % (s_t0, s_t0)); e('s_add_u32 s%d, s%d, %d' % (s_so, s_t0, PQ - 32 * 1024))
                    else:
                        e('s_mul_i32 s%d, s%d, 43' % (s_t0, s_t0)); e('s_lshl_b32 s%d, s95, 1' % s_t1)
                        e('s_add_u32 s%d, s%d, s%d' % (s_t0, s_t0, s_t1))
                        e('s_lshl_b32 s%d, s%d, 3' % (s_t1, s_g)); e('s_add_u32 s%d, s%d, s%d' % (s_t0, s_t0, s_t1))
                        e('s_lshl_b32 s%d, s%d, 10' % (s_t0, s_t0)); e('s_add_u32 s%d, s%d, %d' % (s_so, s_t0, Z1 - 88 * 1024))
                    stores.append(e('buffer_store_dwordx4 %s, v%d, %s, s%d offen sc1' % (vr(d8, 4), vo, srd(sWS), s_so)))
                    stores.append(e('buffer_store_dwordx4 %s, v%d, %s, s%d offen offset:%d sc1' % (vr(d8 + 4, 4), vo, srd(sWS), s_so, 512 if sub == 'q' else 1024)))
                    pump_w()
            arr = lambda: (e('s_lshl_b32 s%d, s%d, 1' % (s_t0, s_rt)), e('s_lshr_b32 s%d, s%d, 1' % (s_t1, s_w)),
                           e('s_add_u32 s%d, s%d, s%d' % (s_t0, s_t0, s_t1)), e('s_lshl_b32 s%d, s%d, 7' % (s_so, s_t0)),
                           e('s_add_u32 s%d, s%d, %d' % (s_so, s_so, C_D1 * 128)))
        while rest: pump_w()
        e.wait(stores)
        arrive(arr)
        e.wait_all('lg')
        ts('p1end')

    e('s_cmp_lt_u32 s%d, 8' % s_g)
    e.raw('s_cbranch_scc0 L_notP')
    path('P')
    e.raw('s_branch L_p2')
    e.label('L_notP')
    e.raw('s_cmp_lt_u32 s%d, 11' % s_g)
    e.raw('s_cbranch_scc0 L_pathR')
    path('Q')
    e.raw('s_branch L_p2')
    e.label('L_pathR')
    path('R')
    e.label('L_p2')
    e.vm = []; e.lg = []

    V2 = RegAlloc(256, 'v')
    V2.take(0); V2.take(vzero); V2.take(vone); V2.take(vpc, 2)
    for x in vt: V2.take(x)
    V = V2
    if cfg.stop != 'p1':
        phase23(e, V, cfg, locals())
    if cfg.ts:
        e.wait_all('lg')
        e('s_lshl_b32 s%d, s2, 2' % s_t0); e('s_add_u32 s%d, s%d, s%d' % (s_t0, s_t0, s_w))
        e('s_lshl_b32 s%d, s%d, 8' % (s_t0, s_t0)); e('s_add_u32 s%d, s%d, %d' % (s_so, s_t0, TS))
        e('%s s[100:101]' % cfg.tsop)
        e('s_mov_b64 exec, 1')
        for k in range(nts[0]):
            e('v_mov_b32 v%d, s%d' % (tA, TSB + 2 * k))
            e('buffer_store_dword v%d, v%d, %s, s%d offen offset:%d' % (tA, vzero, srd(sWS), s_so, 4 * k))
        e('v_mov_b32 v%d, s100' % tA)
        e('buffer_store_dword v%d, v%d, %s, s%d offen offset:%d' % (tA, vzero, srd(sWS), s_so, 4 * nts[0]))
        tsnames.append('end')
    e.label('L_end')
    e.raw('s_endpgm')
    ins, nn = fix_hazards(e.ins)
    body = '\n'.join(x.text for x in ins)
    return body, nn, tsnames, len(ins)


def phase23(e, V, cfg, L):
    g = lambda n: L[n]
    sX, sWS, sWO, sWT, sOUT, sBSP = (g(n) for n in ('sX', 'sWS', 'sWO', 'sWT', 'sOUT', 'sBSP'))
    s_w, s_i, s_j, s_rot2, s_t0, s_t1, s_t2, s_t3, s_so, s_m4k = (g(n) for n in ('s_w', 's_i', 's_j', 's_rot2', 's_t0', 's_t1', 's_t2', 's_t3', 's_so', 's_m4k'))
    tA, tB, tC, tD = (g(n) for n in ('tA', 'tB', 'tC', 'tD'))
    t8, p8, l4, m15 = (g(n) for n in ('t8', 'p8', 'l4', 'm15'))
    vzero, vone, vpc = g('vzero'), g('vone'), g('vpc')
    srd, ts, spin_until, arrive, areg, dma = (g(n) for n in ('srd', 'ts', 'spin_until', 'arrive', 'areg', 'dma'))
    s_B0, s_ncb, s_zb, s_par = 64, 65, 68, 69

    acc = V.alloc(96, 16)
    DB = cfg.DB
    ring = V.alloc(12 * DB)
    vZ = V.alloc(3); vpoll = V.alloc()
    e('v_lshrrev_b32 v%d, 2, v0' % tA); e('v_lshlrev_b32 v%d, 7, v%d' % (tA, tA))
    e('s_lshl_b32 s%d, s%d, 11' % (s_t0, s_w)); e('s_add_u32 s%d, s%d, %d' % (s_t3, s_t0, C_S1 * 128))
    s1_load = lambda: e('buffer_load_dword v%d, v%d, %s, s%d offen sc1' % (vpoll, tA, srd(sWS), s_t3))
    s1_load()
    e('s_mul_i32 s%d, s%d, 3' % (s_B0, s_j))
    e('s_cmp_eq_u32 s%d, 7' % s_j); e('s_cselect_b32 s%d, 20, s%d' % (s_B0, s_B0))
    e('s_cmp_ge_u32 s%d, 6' % s_j); e('s_cselect_b32 s%d, 2, 3' % s_ncb)
    e('s_and_b32 s%d, s%d, 1' % (s_par, s_w))
    e('s_lshl_b32 s%d, s%d, 4' % (s_t0, s_par))
    e('v_xor_b32 v%d, s%d, v0' % (tB, s_t0)); e('v_lshlrev_b32 v%d, 4, v%d' % (tB, tB))
    for c in range(3):
        e('s_cmp_eq_u32 s%d, 0' % s_par); e('s_cselect_b32 s%d, %d, %d' % (s_t0, c, 2 - c))
        e('s_add_u32 s%d, s%d, s%d' % (s_t1, s_t0, s_B0)); e('s_lshl_b32 s%d, s%d, 12' % (s_t1, s_t1))
        e('s_cmp_lt_u32 s%d, s%d' % (s_t0, s_ncb)); e('s_cselect_b32 s%d, s%d, 0x%x' % (s_t1, s_t1, OOB))
        e('v_add_u32 v%d, s%d, v%d' % (vZ + c, s_t1, tB))
    voT = V.alloc(4)
    e('v_lshlrev_b32 v%d, 1, v%d' % (tB, l4)); e('v_xor_b32 v%d, v%d, v%d' % (tB, tB, p8))
    e('v_lshlrev_b32 v%d, 4, v%d' % (tB, tB)); e('v_lshl_add_u32 v%d, v%d, 10, v%d' % (tB, t8, tB))
    e('s_lshl_b32 s%d, s%d, 7' % (s_t0, s_j)); e('v_add_u32 v%d, s%d, v%d' % (voT, s_t0, tB))
    for n in range(1, 4): e('v_add_u32 v%d, %d, v%d' % (voT + n, n * 7168, voT))
    vlin = V.alloc(); e('v_lshlrev_b32 v%d, 4, v0' % vlin)
    spin_until(s1_load, lambda: e('v_cmp_gt_u32 vcc, 11, v%d' % vpoll), 'S1')
    ts('s1ok')
    def b_load(pos):
        q, kk = pos >> 2, pos & 3
        if kk == 0:
            e('s_add_u32 s%d, s%d, %d' % (s_t0, s_rot2, q)); e('s_and_b32 s%d, s%d, 7' % (s_t0, s_t0))
            e('s_lshl_b32 s%d, s%d, 3' % (s_t1, s_w)); e('s_add_u32 s%d, s%d, s%d' % (s_t0, s_t0, s_t1))
            e('s_mul_i32 s%d, s%d, %d' % (s_zb, s_t0, 22 * 4096)); e('s_add_u32 s%d, s%d, %d' % (s_zb, s_zb, Z2N))
        for c in range(3):
            r = ring + 12 * (pos % DB) + 4 * c
            e('buffer_load_dwordx4 %s, v%d, %s, s%d offen offset:%d sc1' % (vr(r, 4), vZ + c, srd(sWS), s_zb, kk * 1024))
    for pos in range(DB): b_load(pos)
    tok_wo = []
    def wo_group(u):
        e('s_lshl_b32 s%d, s%d, 17' % (s_t0, s_w)); e('s_add_u32 s%d, s%d, %d' % (s_so, s_t0, u * 32768))
        e('s_lshl_b32 s%d, s%d, 14' % (s_t0, s_w)); e('s_add_u32 m0, s%d, %d' % (s_t0, L_WO + u * 4096))
        e('s_nop 0')
        for n in range(4): tok_wo.append(dma(voT + n, sWO, s_so, n))
    vH = V.alloc(3); vb = V.alloc()
    lazy = {}
    def d1_load():
        e('s_lshl_b32 s%d, s%d, 7' % (s_so, s_i)); e('s_add_u32 s%d, s%d, %d' % (s_so, s_so, C_D1 * 128))
        e('buffer_load_dword v%d, v%d, %s, s%d offen sc1' % (vpoll, vzero, srd(sWS), s_so))
    def d1_chk():
        spin_until(d1_load, lambda: e('v_cmp_gt_u32 vcc, 16, v%d' % vpoll), 'D1')
        z1r = lazy['z1r'] = V.alloc(12)
        e('s_lshl_b32 s%d, s%d, 2' % (s_t0, s_i)); e('s_add_u32 s%d, s%d, s%d' % (s_t0, s_t0, s_w))
        e('s_lshl_b32 s%d, s%d, 14' % (s_t0, s_t0)); e('s_add_u32 s%d, s%d, %d' % (s_t0, s_t0, PQ))
        for m in range(16):
            if (m & 3) == 0: e('s_add_u32 s%d, s%d, %d' % (s_so, s_t0, (m >> 2) * 4096))
            e('buffer_load_dwordx4 %s, v%d, %s, s%d offen offset:%d sc1' % (ar(4 * m, 4), vlin, srd(sWS), s_so, (m & 3) * 1024))
        e('s_lshr_b32 s%d, s%d, 1' % (s_t3, s_w)); e('s_lshl_b32 s%d, s%d, 1' % (s_t0, s_i))
        e('s_add_u32 s%d, s%d, s%d' % (s_t3, s_t3, s_t0))
        e('v_bfe_u32 v%d, v0, 4, 1' % tA); e('v_mul_u32_u24 v%d, 22528, v%d' % (tA, tA))
        e('v_lshrrev_b32 v%d, 5, v0' % tB); e('v_lshl_add_u32 v%d, v%d, 8, v%d' % (tA, tB, tA))
        e('v_lshl_add_u32 v%d, v%d, 4, v%d' % (tA, m15, tA))
        for k in range(3):
            e('s_cmp_eq_u32 s%d, 0' % s_par); e('s_cselect_b32 s%d, %d, %d' % (s_t0, k, 5 - k))
            e('s_lshl_b32 s%d, s%d, 1' % (s_t1, s_B0)); e('s_add_u32 s%d, s%d, s%d' % (s_t1, s_t1, s_t0))
            e('s_mul_i32 s%d, s%d, 43' % (s_t2, s_t3)); e('s_add_u32 s%d, s%d, s%d' % (s_t2, s_t2, s_t1))
            e('s_lshl_b32 s%d, s%d, 10' % (s_t2, s_t2)); e('s_add_u32 s%d, s%d, %d' % (s_so, s_t2, Z1 - 1024))
            e('s_cmp_eq_u32 s%d, 0' % s_t1); e('s_cselect_b32 s%d, 0x%x, s%d' % (s_so, OOB, s_so))
            e('s_lshr_b32 s%d, s%d, 1' % (s_t0, s_t0))
            e('s_cmp_lt_u32 s%d, s%d' % (s_t0, s_ncb)); e('s_cselect_b32 s%d, s%d, 0x%x' % (s_so, s_so, OOB))
            e('buffer_load_dwordx4 %s, v%d, %s, s%d offen sc1' % (vr(z1r + 4 * k, 4), vlin, srd(sWS), s_so))
            e('s_mul_i32 s%d, s%d, %d' % (s_t2, s_t3, 44 * 1024)); e('s_lshl_b32 s%d, s%d, 9' % (s_t1, s_t1))
            e('s_add_u32 s%d, s%d, s%d' % (s_t2, s_t2, s_t1)); e('s_add_u32 s%d, s%d, %d' % (s_t2, s_t2, HB))
            e('s_cmp_lt_u32 s%d, s%d' % (s_t0, s_ncb)); e('s_cselect_b32 s%d, s%d, 0x%x' % (s_t2, s_t2, OOB))
            e('v_add_u32 v%d, s%d, v%d' % (vH + k, s_t2, tA))
        e('v_and_b32 v%d, 31, v0' % tB); e('v_lshlrev_b32 v%d, 1, v%d' % (tB, tB))
        e('s_lshl_b32 s%d, s%d, 6' % (s_so, s_t3))
        e('buffer_load_ushort v%d, v%d, %s, s%d offen' % (vb, tB, srd(sBSP), s_so))
    def s3_load():
        e('v_lshrrev_b32 v%d, 2, v0' % tA); e('v_lshlrev_b32 v%d, 7, v%d' % (tA, tA))
        e('s_mov_b32 s%d, %d' % (s_so, C_S3 * 128))
        e('buffer_load_dword v%d, v%d, %s, s%d offen sc1' % (vpoll, tA, srd(sWS), s_so))
    def s3_chk():
        spin_until(s3_load, lambda: e('v_cmp_gt_u32 vcc, 8, v%d' % vpoll), 'S3')
        kvr = lazy['kvr'] = V.alloc(18, 4)
        e('s_add_u32 s%d, s%d, %d' % (s_so, s_m4k, KVT))
        for n in range(4): e('buffer_load_dwordx4 %s, v%d, %s, s%d offen offset:%d sc1' % (vr(kvr + 4 * n, 4), vlin, srd(sWS), s_so, n * 1024))
        e('v_lshlrev_b32 v%d, 3, v0' % tB)
        e('s_lshl_b32 s%d, s%d, 9' % (s_t0, s_w)); e('s_add_u32 s%d, s%d, %d' % (s_so, s_t0, KVT + 16384))
        e('buffer_load_dwordx2 %s, v%d, %s, s%d offen sc1' % (vr(kvr + 16, 2), tB, srd(sWS), s_so))
    def reducer():
        ld = e.newlabel('L_nored')
        e('s_cmp_eq_u32 s%d, 6' % s_j)
        e.raw('s_cbranch_scc0 %s' % ld)
        e.begin_opt()
        T = V.alloc(32); Z = V.alloc(8)
        def kv_load():
            e('s_lshr_b32 s%d, s%d, 1' % (s_t0, s_i)); e('s_lshl_b32 s%d, s%d, 7' % (s_so, s_t0)); e('s_add_u32 s%d, s%d, %d' % (s_so, s_so, C_KV * 128))
            e('buffer_load_dword v%d, v%d, %s, s%d offen sc1' % (vpoll, vzero, srd(sWS), s_so))
        kv_load()
        spin_until(kv_load, lambda: e('v_cmp_gt_u32 vcc, 32, v%d' % vpoll), 'KV')
        e('v_lshlrev_b32 v%d, 13, v%d' % (tA, l4)); e('v_lshl_add_u32 v%d, v%d, 4, v%d' % (tA, m15, tA))
        e('s_lshl_b32 s%d, s%d, 15' % (s_t0, s_i)); e('s_lshl_b32 s%d, s%d, 8' % (s_t1, s_w))
        e('s_add_u32 s%d, s%d, s%d' % (s_t0, s_t0, s_t1)); e('s_add_u32 s%d, s%d, %d' % (s_so, s_t0, KVP))
        e('s_add_u32 s%d, s%d, 4096' % (s_t2, s_so))
        for u in range(8):
            e('buffer_load_dwordx4 %s, v%d, %s, s%d offen offset:%d sc1' % (vr(T + 4 * u, 4), tA, srd(sWS), s_so if u < 4 else s_t2, (u & 3) * 1024))
        e('v_and_b32 v%d, 31, v0' % tB); e('v_lshlrev_b32 v%d, 6, v%d' % (tB, tB))
        e('s_lshl_b32 s%d, s%d, 11' % (s_t0, s_i)); e('s_lshl_b32 s%d, s%d, 4' % (s_t1, s_w))
        e('s_add_u32 s%d, s%d, s%d' % (s_t0, s_t0, s_t1)); e('s_add_u32 s%d, s%d, %d' % (s_so, s_t0, ZP))
        e('buffer_load_dwordx4 %s, v%d, %s, s%d offen sc1' % (vr(Z, 4), tB, srd(sWS), s_so))
        for u in range(1, 8):
            for r in range(4): e('v_add_f32 v%d, v%d, v%d' % (T + r, T + r, T + 4 * u + r))
        for op in ('v_permlane16_swap_b32', 'v_permlane32_swap_b32'):
            for r in range(4): e('v_mov_b32 v%d, v%d' % (T + 4 + r, T + r))
            for r in range(4): e('%s v%d, v%d' % (op, T + r, T + 4 + r))
            for r in range(4): e('v_add_f32 v%d, v%d, v%d' % (T + r, T + r, T + 4 + r))
        e('v_cvt_pk_bf16_f32 v%d, v%d, v%d' % (T + 8, T, T + 1)); e('v_cvt_pk_bf16_f32 v%d, v%d, v%d' % (T + 9, T + 2, T + 3))
        for sh in (8, 4, 2, 1):
            for r in range(4): e('v_add_f32_dpp v%d, v%d, v%d row_ror:%d row_mask:0xf bank_mask:0xf' % (Z + r, Z + r, Z + r, sh))
        for r in range(4): e('v_mov_b32 v%d, v%d' % (Z + 4 + r, Z + r))
        for r in range(4): e('v_permlane16_swap_b32 v%d, v%d' % (Z + r, Z + 4 + r))
        for r in range(4): e('v_add_f32 v%d, v%d, v%d' % (Z + r, Z + r, Z + 4 + r))
        e('v_cvt_pk_bf16_f32 v%d, v%d, v%d' % (Z + 4, Z, Z + 1)); e('v_cvt_pk_bf16_f32 v%d, v%d, v%d' % (Z + 5, Z + 2, Z + 3))
        e('s_and_b32 s%d, s%d, 1' % (s_t1, s_i))
        e('s_cmp_eq_u32 s%d, 0' % s_t1); e('s_cselect_b32 s%d, -1, 0' % s_t2); e('s_not_b32 s%d, s%d' % (s_t3, s_t2))
        e('v_and_b32 v%d, s%d, v%d' % (Z, s_t2, Z + 4)); e('v_and_b32 v%d, s%d, v%d' % (Z + 1, s_t2, Z + 5))
        e('v_and_b32 v%d, s%d, v%d' % (Z + 2, s_t3, Z + 4)); e('v_and_b32 v%d, s%d, v%d' % (Z + 3, s_t3, Z + 5))
        e('s_lshr_b32 s%d, s%d, 1' % (s_t0, s_i)); e('s_lshl_b32 s%d, s%d, 10' % (s_t2, s_t0))
        e('s_lshl_b32 s%d, s%d, 8' % (s_t3, s_w)); e('s_add_u32 s%d, s%d, s%d' % (s_t2, s_t2, s_t3))
        e('s_lshl_b32 s%d, s%d, 3' % (s_t3, s_t1)); e('s_add_u32 s%d, s%d, s%d' % (s_t2, s_t2, s_t3))
        e('s_add_u32 s%d, s%d, %d' % (s_so, s_t2, KVT))
        e('s_mov_b32 exec_lo, 0xffff'); e('s_mov_b32 exec_hi, 0')
        k1 = e('buffer_store_dwordx2 %s, v%d, %s, s%d offen sc1' % (vr(T + 8, 2), vlin, srd(sWS), s_so))
        e('s_lshl_b32 s%d, s%d, 6' % (s_t2, s_i)); e('s_lshl_b32 s%d, s%d, 4' % (s_t3, s_w))
        e('s_add_u32 s%d, s%d, s%d' % (s_t2, s_t2, s_t3)); e('s_add_u32 s%d, s%d, %d' % (s_so, s_t2, KVT + 16384))
        e('s_mov_b64 exec, 1')
        k2 = e('buffer_store_dwordx4 %s, v%d, %s, s%d offen sc1' % (vr(Z, 4), vzero, srd(sWS), s_so))
        e('s_mov_b64 exec, -1')
        e.wait([k1, k2])
        arrive(lambda: (e('s_lshl_b32 s%d, s%d, 7' % (s_so, s_t0)), e('s_add_u32 s%d, s%d, %d' % (s_so, s_so, C_S3 * 128))))
        V.free(T, 32); V.free(Z, 8)
        e.end_opt()
        e.label(ld)

    for pos in range(32):
        for c in range(3):
            for rb in range(2):
                a = vr(acc + 48 * rb + 16 * c, 16)
                e('v_mfma_f32_32x32x16_bf16 %s, %s, %s, %s' % (a, vr(ring + 12 * (pos % DB) + 4 * c, 4), ar(areg(pos >> 2, pos & 3, rb), 4), '0' if pos == 0 else a))
        if pos + DB < 32: b_load(pos + DB)
        if pos in cfg.wo_pos: wo_group(cfg.wo_pos.index(pos))
        if pos == 16: e.raw('s_barrier')
        if pos == cfg.red_pos: reducer()
        if pos == cfg.d1_poll: d1_load()
        if pos == cfg.d1_chk: d1_chk()
        if pos == cfg.s3_poll: s3_load()
        if pos == cfg.s3_chk: s3_chk()
    ts('p2loop')
    z1r, kvr = lazy['z1r'], lazy['kvr']
    V.free(ring, 12 * DB); V.free(vZ, 3)
    vR = V.alloc(4)
    for d in range(4):
        e('s_xor_b32 s%d, s%d, %d' % (s_t0, s_w, d)); e('s_mul_i32 s%d, s%d, 18432' % (s_t0, s_t0))
        e('v_add_u32 v%d, s%d, v%d' % (vR + d, s_t0, vlin))
    for rb in range(2):
        for hb in range(6):
            d = 2 * rb + (1 if hb >= 3 else 0)
            if d == 0: continue
            k = hb if (d & 1) == 0 else 5 - hb
            a = acc + 48 * rb + 8 * hb
            for h2 in range(2):
                e('ds_write_b128 v%d, %s offset:%d' % (vR + d, vr(a + 4 * h2, 4), L_RED + (d - 1) * 6144 + k * 2048 + h2 * 1024))
    e('v_add_u32 v%d, s%d, v%d' % (tA, s_m4k, vlin)); e('v_add_u32 v%d, %d, v%d' % (tA, L_KV, tA))
    for n in range(4): e('ds_write_b128 v%d, %s offset:%d' % (tA, vr(kvr + 4 * n, 4), n * 1024))
    e('v_lshlrev_b32 v%d, 3, v0' % tB); e('s_lshl_b32 s%d, s%d, 9' % (s_t0, s_w)); e('s_add_u32 s%d, s%d, %d' % (s_t0, s_t0, L_KV + 16384))
    e('v_add_u32 v%d, s%d, v%d' % (tB, s_t0, tB))
    e('ds_write_b64 v%d, %s' % (tB, vr(kvr + 16, 2)))
    e.wait(tok_wo); e.wait_all('lg')
    e.raw('s_barrier')
    V.free(kvr, 18)
    rd = V.alloc(72 - 24)
    dst = [rd, rd + 24, acc + 48]
    for d in range(3):
        for k in range(3):
            for h2 in range(2):
                e('ds_read_b128 %s, v%d offset:%d' % (vr(dst[d] + 8 * k + 4 * h2, 4), vR, L_RED + d * 6144 + k * 2048 + h2 * 1024))
    e('v_lshlrev_b32 v%d, 16, v%d' % (vb, vb))
    for d in range(3):
        for r in range(12): e('v_pk_add_f32 %s, %s, %s' % (vr(acc + 2 * r, 2), vr(acc + 2 * r, 2), vr(dst[d] + 2 * r, 2)))
    e.raw('s_barrier')
    tok_wt = []
    def wt_group(u, base, store):
        e('s_lshl_b32 s%d, s%d, 15' % (s_t0, s_w))
        if u == 0:
            e('s_sub_u32 s%d, s%d, 16384' % (s_so, s_t0))
            e('s_cmp_eq_u32 s%d, 0' % s_w); e('s_cselect_b32 s%d, 0x%x, s%d' % (s_so, OOB, s_so))
            e('s_add_u32 m0, s%d, %d' % (s_m4k, base)); e('s_nop 0')
            for n in range(2): store.append(dma(voT + n, sWT, s_so, n))
            e('s_add_u32 m0, s%d, %d' % (s_m4k, base + 2048)); e('s_nop 0')
            for n in range(2): store.append(dma(voT + n, sWT, s_t0, n))
        else:
            e('s_add_u32 s%d, s%d, %d' % (s_so, s_t0, u * 131072 - 16384))
            e('s_add_u32 m0, s%d, %d' % (s_m4k, base)); e('s_nop 0')
            for n in range(4): store.append(dma(voT + n, sWT, s_so, n))
    hb_ = rd
    bb = V.alloc(2); e('v_mov_b32 v%d, v%d' % (bb, vb)); e('v_mov_b32 v%d, v%d' % (bb + 1, vb))
    for r in range(12): e('v_pk_add_f32 %s, %s, %s' % (vr(acc + 2 * r, 2), vr(acc + 2 * r, 2), vr(bb, 2)))
    for r in range(12):
        e('v_lshlrev_b32 v%d, 16, v%d' % (rd + 24 + 2 * r, z1r + r)); e('v_and_b32 v%d, 0xffff0000, v%d' % (rd + 24 + 2 * r + 1, z1r + r))
    for r in range(12): e('v_pk_mul_f32 %s, %s, %s' % (vr(acc + 2 * r, 2), vr(acc + 2 * r, 2), vr(rd + 24 + 2 * r, 2)))
    for r in range(12): e('v_cvt_pk_bf16_f32 v%d, v%d, v%d' % (hb_ + r, acc + 2 * r, acc + 2 * r + 1))
    tok_h = [e('buffer_store_dwordx4 %s, v%d, %s, 0 offen sc1' % (vr(hb_ + 4 * k, 4), vH + k, srd(sWS))) for k in range(3)]
    for u in range(4): wt_group(u, L_WT + u * 16384, tok_wt)
    ts('hstored')
    V.free(acc, 96); V.free(z1r, 12); V.free(vH, 3); V.free(vb); V.free(bb, 2); V.free(vR, 4)
    if cfg.stop == 'p2':
        e.wait(tok_h)
        return
    vWO = V.alloc(4); vden = V.alloc(); vkv = V.alloc()
    e('v_lshrrev_b32 v%d, 2, v0' % tA)
    e('v_bfe_u32 v%d, v0, 3, 2' % tB)
    e('v_and_b32 v%d, 3, v0' % tC)
    e('v_lshlrev_b32 v%d, 7, v%d' % (tA, tA)); e('v_lshl_add_u32 v%d, v%d, 3, v%d' % (tA, tC, tA))
    e('v_lshl_add_u32 v%d, v%d, 5, v%d' % (vWO, tB, tA)); e('v_add_u32 v%d, %d, v%d' % (vWO, L_WO, vWO))
    for b in range(1, 4): e('v_xor_b32 v%d, %d, v%d' % (vWO + b, b * 32, vWO))
    e('v_and_b32 v%d, 1, v0' % tA); e('v_lshlrev_b32 v%d, 6, v%d' % (tA, tA)); e('v_lshl_add_u32 v%d, v%d, 4, v%d' % (tA, l4, tA))
    e('v_add_u32 v%d, %d, v%d' % (vden, L_KV + 16384, tA))
    e('v_add_u32 v%d, %d, v%d' % (vkv, L_KV, vlin))
    sacc = V.alloc(16); gacc = V.alloc(16)
    NB = 3
    kvA = [V.alloc(4) for _ in range(NB)]; dnA = [V.alloc(4) for _ in range(NB)]
    N_ = [V.alloc(12) for _ in range(2)]; of = [V.alloc(4) for _ in range(2)]; wf = [V.alloc(16) for _ in range(2)]
    rc = V.alloc(2)
    def rd_kv(m):
        e('ds_read_b128 %s, v%d offset:%d' % (vr(kvA[m % NB], 4), vkv, m * 1024))
        e('ds_read_b128 %s, v%d offset:%d' % (vr(dnA[m % NB], 4), vden, m * 128))
    def rd_w(base, m, off2, W):
        for b in range(4):
            for e2 in range(2):
                e('ds_read_b64_tr_b16 %s, v%d offset:%d' % (vr(W + 4 * b + 2 * e2, 2), base + b, m * 4096 + e2 * off2))
    def o_mfma(m):
        n = N_[m & 1]; k = kvA[m % NB]
        e('v_mfma_f32_16x16x32_bf16 %s, %s, %s, 0' % (vr(n + 8, 4), vr(dnA[m % NB], 4), ar(4 * m, 4)))
        e('v_mfma_f32_16x16x16_bf16 %s, %s, %s, 0' % (vr(n, 4), vr(k, 2), ar(4 * m, 2)))
        e('v_mfma_f32_16x16x16_bf16 %s, %s, %s, 0' % (vr(n + 4, 4), vr(k + 2, 2), ar(4 * m + 2, 2)))
    def o_valu(m):
        n = N_[m & 1]; o = of[m & 1]
        L_ = ['v_add_f32 v%d, v%d, v%d' % (rc, vpc + 1, n + 8), 'v_add_f32 v%d, v%d, v%d' % (rc + 1, vpc + 1, n + 9),
              'v_rcp_f32 v%d, v%d' % (rc, rc), 'v_rcp_f32 v%d, v%d' % (rc + 1, rc + 1)]
        for r in range(8): L_.append('v_mul_f32 v%d, v%d, v%d' % (n + r, n + r, rc + (r >> 2)))
        for r in range(4): L_.append('v_cvt_pk_bf16_f32 v%d, v%d, v%d' % (o + r, n + 2 * r, n + 2 * r + 1))
        return L_
    def s_mfma(m, fill):
        for b in range(4):
            a = vr(sacc + 4 * b, 4)
            e('v_mfma_f32_16x16x32_bf16 %s, %s, %s, %s' % (a, vr(wf[m & 1] + 4 * b, 4), vr(of[m & 1], 4), '0' if m == 0 else a))
            for _ in range(4):
                if fill: e(fill.pop(0))
    vpoll2 = vpoll
    def s4_load():
        e('s_lshr_b32 s%d, s%d, 1' % (s_t0, s_w)); e('s_lshl_b32 s%d, s%d, 1' % (s_t1, s_i)); e('s_add_u32 s%d, s%d, s%d' % (s_t0, s_t0, s_t1))
        e('s_lshl_b32 s%d, s%d, 7' % (s_so, s_t0)); e('s_add_u32 s%d, s%d, %d' % (s_so, s_so, C_S4 * 128))
    rd_kv(0); rd_kv(1); rd_w(vWO, 0, 2048, wf[0])
    o_mfma(0)
    for m in range(17):
        if m + 2 < 16: rd_kv(m + 2)
        if m + 1 < 16: o_mfma(m + 1)
        fill = o_valu(m) if m < 16 else []
        if m >= 1: s_mfma(m - 1, fill)
        for x in fill: e(x)
        if 1 <= m + 0 < 16 or m == 0:
            if m + 1 < 16 and m >= 1: rd_w(vWO, m + 1, 2048, wf[(m + 1) & 1])
            if m == 0: rd_w(vWO, 1, 2048, wf[1])
        if m == 3:
            e.wait(tok_h)
            arrive(s4_load)
    xr = V.alloc(8); vO = V.alloc()
    e('s_lshl_b32 s%d, s%d, 2' % (s_t0, s_i)); e('s_add_u32 s%d, s%d, s%d' % (s_t3, s_t0, s_w))
    e('v_lshlrev_b32 v%d, 10, v%d' % (vO, m15)); e('v_lshl_add_u32 v%d, v%d, 3, v%d' % (vO, l4, vO))
    e('s_lshl_b32 s%d, s%d, 14' % (s_t0, s_t3)); e('s_lshl_b32 s%d, s%d, 7' % (s_t1, s_j)); e('s_add_u32 s%d, s%d, s%d' % (s_t0, s_t0, s_t1))
    e('v_add_u32 v%d, s%d, v%d' % (vO, s_t0, vO))
    def s4_poll():
        s4_load()
        e('buffer_load_dword v%d, v%d, %s, s%d offen sc1' % (vpoll2, vzero, srd(sWS), s_so))
    s4_poll()
    for b in range(4): e('buffer_load_dwordx2 %s, v%d, %s, 0 offen offset:%d' % (vr(xr + 2 * b, 2), vO, srd(sX), b * 32))
    e.wait(tok_wt); e.wait_all('lg')
    e.raw('s_barrier')
    ts('sdone')
    tok_wt2 = []
    wt_group(4, L_WT2, tok_wt2)
    lsk = e.newlabel('L_nowt')
    e('s_cmp_lt_u32 s%d, 2' % s_w)
    e.raw('s_cbranch_scc0 %s' % lsk)
    e.begin_opt()
    wt_group(5, L_WT2 + 16384, tok_wt2)
    e.end_opt()
    e.label(lsk)
    vWT = vWO
    e('v_lshrrev_b32 v%d, 5, v0' % tA); e('v_lshlrev_b32 v%d, 4, v%d' % (tA, tA))
    e('v_bfe_u32 v%d, v0, 2, 3' % tB); e('v_add_u32 v%d, v%d, v%d' % (tA, tA, tB))
    e('v_bfe_u32 v%d, v0, 3, 2' % tB); e('v_and_b32 v%d, 3, v0' % tC)
    e('v_lshlrev_b32 v%d, 7, v%d' % (tA, tA)); e('v_lshl_add_u32 v%d, v%d, 3, v%d' % (tA, tC, tA))
    e('v_lshl_add_u32 v%d, v%d, 5, v%d' % (vWT, tB, tA))
    for b in range(1, 4): e('v_xor_b32 v%d, %d, v%d' % (vWT + b, b * 32, vWT))
    spin_until(s4_poll, lambda: e('v_cmp_gt_u32 vcc, 16, v%d' % vpoll2), 'S4')
    ts('s4ok')
    e('s_mul_i32 s%d, s%d, %d' % (s_t0, s_t3, 22 * 1024)); e('s_add_u32 s%d, s%d, %d' % (s_t0, s_t0, HB))
    for B in range(22):
        if (B & 3) == 0: e('s_add_u32 s%d, s%d, %d' % (s_so, s_t0, (B >> 2) * 4096))
        e('buffer_load_dwordx4 %s, v%d, %s, s%d offen offset:%d sc1' % (ar(64 + 4 * B, 4), vlin, srd(sWS), s_so, (B & 3) * 1024))
    rd_w(vWT, 0, 1024, wf[0])
    for B in range(22):
        if B + 1 == 16:
            e.wait(tok_wt2); e.wait_all('lg')
            e.raw('s_barrier')
            for b in range(4): e('v_add_u32 v%d, %d, v%d' % (vWT + b, L_WT2 - L_WT, vWT + b))
        if B + 1 < 22: rd_w(vWT, (B + 1) & 15, 1024, wf[(B + 1) & 1])
        for b in range(4):
            a = vr(gacc + 4 * b, 4)
            e('v_mfma_f32_16x16x32_bf16 %s, %s, %s, %s' % (a, vr(wf[B & 1] + 4 * b, 4), ar(64 + 4 * B, 4), '0' if B == 0 else a))
    ts('gdone')
    t = V.alloc(16); xf = V.alloc(16)
    P = lambda b, k: vr(b + 2 * k, 2)
    for k in range(8):
        e('v_lshlrev_b32 v%d, 16, v%d' % (xf + 2 * k, xr + k)); e('v_and_b32 v%d, 0xffff0000, v%d' % (xf + 2 * k + 1, xr + k))
    for k in range(8): e('v_pk_mul_f32 %s, %s, %s op_sel:[0,0] op_sel_hi:[1,0] neg_lo:[0,1] neg_hi:[0,1]' % (P(t, k), P(gacc, k), vr(vpc, 2)))
    for k in range(16): e('v_exp_f32 v%d, v%d' % (t + k, t + k))
    for k in range(8): e('v_pk_mul_f32 %s, %s, %s' % (P(gacc, k), P(gacc, k), P(sacc, k)))
    for k in range(8): e('v_pk_add_f32 %s, %s, 1.0 op_sel_hi:[1,0]' % (P(t, k), P(t, k)))
    for k in range(16): e('v_rcp_f32 v%d, v%d' % (t + k, t + k))
    for k in range(8): e('v_pk_fma_f32 %s, %s, %s, %s' % (P(t, k), P(t, k), P(gacc, k), P(xf, k)))
    for k in range(8): e('v_cvt_pk_bf16_f32 v%d, v%d, v%d' % (xr + k, t + 2 * k, t + 2 * k + 1))
    for b in range(4): e('buffer_store_dwordx2 %s, v%d, %s, 0 offen offset:%d' % (vr(xr + 2 * b, 2), vO, srd(sOUT), b * 32))


HEADER = open('recurrent_scan__linear_attn_block__mixer_gmlp__prompt.s.ref').read().split('; Override')[0]

def build(cfg=Cfg):
    body, nn, tsn, n = gen(cfg)
    est = sum(8 for _ in range(n))
    slices = 8
    txt = HEADER + '; @launch grid=(256,1,1) block=(256,1,1) lds=163840\n'
    txt += '.amdgcn_target "amdgcn-amd-amdhsa--gfx950"\n.set CODE_SLICES, %d\n.text\n.globl %s\n.p2align 8\n.type %s,@function\n%s:\n' % (slices, KNAME, KNAME, KNAME)
    txt += body + '\n'
    txt += '.p2align 8\n.fill 16384, 4, 0xbf800000\n' if False else ''
    txt += '''.section .rodata,"a"
.p2align 6
.amdhsa_kernel %s
  .amdhsa_next_free_vgpr 512
  .amdhsa_next_free_sgpr 102
  .amdhsa_accum_offset 256
  .amdhsa_group_segment_fixed_size 0
  .amdhsa_kernarg_size 88
  .amdhsa_user_sgpr_count 2
  .amdhsa_user_sgpr_kernarg_segment_ptr 1
  .amdhsa_system_sgpr_workgroup_id_x 1
.end_amdhsa_kernel
''' % KNAME
    return txt, nn, tsn, n

if __name__ == '__main__':
    import argparse
    ap = argparse.ArgumentParser()
    ap.add_argument('-o', default='k.s')
    ap.add_argument('--ts', action='store_true')
    ap.add_argument('--stop', default=None)
    ap.add_argument('--set', action='append', default=[])
    a = ap.parse_args()
    Cfg.ts = a.ts; Cfg.stop = a.stop
    for kv in a.set:
        k, v = kv.split('=', 1); setattr(Cfg, k, eval(v))
    txt, nn, tsn, n = build(Cfg)
    open(a.o, 'w').write(txt)
    open(a.o + '.ts', 'w').write(' '.join(tsn))
    print('instructions', n, 'nops inserted', nn, 'ts', tsn)
```
